```python
import torch

def _softmax(x, axis=-1):
    return torch.softmax(x, dim=axis)
def _gelu(x):
    return torch.nn.functional.gelu(x, approximate="tanh")
def _silu(x):
    return torch.nn.functional.silu(x)
def _sigmoid(x):
    return torch.sigmoid(x)
def _layernorm(x, axis=-1, eps=1e-5):
    m = x.mean(dim=axis, keepdim=True)
    v = x.var(dim=axis, keepdim=True, unbiased=False)
    return (x - m) / torch.sqrt(v + eps)
def _scatter_add(tgt, idx, src, axis=0):
    return tgt.clone().index_add_(axis, idx, src)
def _segment_sum(src, seg, n):
    out = torch.zeros((n,) + src.shape[1:], dtype=src.dtype)
    return out.index_add_(0, seg, src)
def _pad(x, pw):
    flat = tuple(v for pair in reversed(pw) for v in pair)
    return torch.nn.functional.pad(x, flat)

kernel_name = 'concat_heads__sliding_block_cached__sliding_block_cached__decode'

def setup_inputs():

    _w = (lambda a: (lambda t: t.to(torch.bfloat16) if t.is_floating_point() else t)(torch.as_tensor(a)))
    def _A_setup():
        B, Sq, D = 2, 1, 512
        Hq, Hkv, Sk, Dh = 32, 32, 8192, 128
        assert Hq % Hkv == 0, (Hq, Hkv)
        return {
            "x": _w((lambda *s: torch.randn(*s, dtype=torch.bfloat16) * 0.8)(B, Sq, D)),
            "k_cache": _w((lambda *s: torch.randn(*s, dtype=torch.bfloat16) * 1.6)(B, Hkv, Sk, Dh)),
            "v_cache": _w((lambda *s: torch.randn(*s, dtype=torch.bfloat16) * 0.2)(B, Hkv, Sk, Dh)),
            "wq": _w((lambda *s: torch.randn(*s, dtype=torch.bfloat16) * 1.6)(D, Hq * Dh) * (D ** -0.5)),
            "wo": _w((lambda *s: torch.randn(*s, dtype=torch.bfloat16) * 0.2)(Hq * Dh, D) * ((Hq * Dh) ** -0.5)),
        }
    _A_in = _A_setup()

    def _B_setup():
        B, Sq, D = 2, 1, 512
        Hq, Hkv, Sk, Dh = 32, 32, 8192, 128
        assert Hq % Hkv == 0, (Hq, Hkv)
        return {
            "x": _w((lambda *s: torch.randn(*s, dtype=torch.bfloat16) * 0.8)(B, Sq, D)),
            "k_cache": _w((lambda *s: torch.randn(*s, dtype=torch.bfloat16) * 1.6)(B, Hkv, Sk, Dh)),
            "v_cache": _w((lambda *s: torch.randn(*s, dtype=torch.bfloat16) * 0.2)(B, Hkv, Sk, Dh)),
            "wq": _w((lambda *s: torch.randn(*s, dtype=torch.bfloat16) * 1.6)(D, Hq * Dh) * (D ** -0.5)),
            "wo": _w((lambda *s: torch.randn(*s, dtype=torch.bfloat16) * 0.2)(Hq * Dh, D) * ((Hq * Dh) ** -0.5)),
        }
    _B_in = _B_setup()

    return {
        "A_x": _A_in["x"],
        "A_k_cache": _A_in["k_cache"],
        "A_v_cache": _A_in["v_cache"],
        "A_wq": _A_in["wq"],
        "A_wo": _A_in["wo"],
        "B_x": _B_in["x"],
        "B_k_cache": _B_in["k_cache"],
        "B_v_cache": _B_in["v_cache"],
        "B_wq": _B_in["wq"],
        "B_wo": _B_in["wo"],
    }

def reference(A_x, A_k_cache, A_v_cache, A_wq, A_wo, B_x, B_k_cache, B_v_cache, B_wq, B_wo):
    def _A_ref(x, k_cache, v_cache, wq, wo):
        B, Sq, D = x.shape
        Hq, Dh = 32, 128
        Hkv, Sk = k_cache.shape[1], k_cache.shape[2]
        W = min(4096, max(256, Sk // 4))
        rep = Hq // Hkv
        q = (lambda x, *d: x.permute(*d))((x @ wq).reshape(B, Sq, Hq, Dh), 0, 2, 1, 3)
        k = (lambda x, n, axis: torch.repeat_interleave(x, n, dim=axis))(k_cache[:, :, Sk - W:, :], rep, axis=1)
        v = (lambda x, n, axis: torch.repeat_interleave(x, n, dim=axis))(v_cache[:, :, Sk - W:, :], rep, axis=1)
        scores = torch.einsum("bhqd,bhkd->bhqk", q, k) * (Dh ** -0.5)
        p = _softmax(scores, axis=-1)
        o = torch.einsum("bhqk,bhkd->bhqd", p, v)
        return (lambda x, *d: x.permute(*d))(o, 0, 2, 1, 3).reshape(B, Sq, Hq * Dh) @ wo

    def _B_ref(x, k_cache, v_cache, wq, wo):
        B, Sq, D = x.shape
        Hq, Dh = 32, 128
        Hkv, Sk = k_cache.shape[1], k_cache.shape[2]
        W = min(4096, max(256, Sk // 4))
        rep = Hq // Hkv
        q = (lambda x, *d: x.permute(*d))((x @ wq).reshape(B, Sq, Hq, Dh), 0, 2, 1, 3)
        k = (lambda x, n, axis: torch.repeat_interleave(x, n, dim=axis))(k_cache[:, :, Sk - W:, :], rep, axis=1)
        v = (lambda x, n, axis: torch.repeat_interleave(x, n, dim=axis))(v_cache[:, :, Sk - W:, :], rep, axis=1)
        scores = torch.einsum("bhqd,bhkd->bhqk", q, k) * (Dh ** -0.5)
        p = _softmax(scores, axis=-1)
        o = torch.einsum("bhqk,bhkd->bhqd", p, v)
        return (lambda x, *d: x.permute(*d))(o, 0, 2, 1, 3).reshape(B, Sq, Hq * Dh) @ wo

    a = _A_ref(A_x, A_k_cache, A_v_cache, A_wq, A_wo)
    b = _B_ref(B_x, B_k_cache, B_v_cache, B_wq, B_wo)
    return torch.concatenate([a, b], axis=-1)
```

```python
import re

_REG = re.compile(r"\b([vsa])(\d+)\b|\b([vsa])\[(\d+):(\d+)\]")


def regs_of(tok):
    out = []
    for m in _REG.finditer(tok):
        if m.group(1):
            out.append((m.group(1), int(m.group(2))))
        else:
            out += [(m.group(3), i) for i in range(int(m.group(4)), int(m.group(5)) + 1)]
    if re.search(r"\bvcc\b", tok):
        out += [("s", 106), ("s", 107)]
    if re.search(r"\bexec(_lo|_hi)?\b", tok):
        out += [("s", 126), ("s", 127)]
    return out


TRANS = ("v_exp_f32", "v_log_f32", "v_rcp_f32", "v_rsq_f32", "v_sqrt_f32", "v_sin_f32", "v_cos_f32")


class Ins:
    def __init__(self, text):
        self.text = text
        body = text.split(";")[0].strip()
        parts = body.split(None, 1)
        self.op = parts[0]
        rest = parts[1] if len(parts) > 1 else ""
        ops, depth, cur = [], 0, ""
        for ch in rest:
            if ch == "[":
                depth += 1
            if ch == "]":
                depth -= 1
            if ch == "," and depth == 0:
                ops.append(cur.strip())
                cur = ""
            else:
                cur += ch
        if cur.strip():
            ops.append(cur.strip())
        self.ops = ops
        op = self.op
        self.is_mfma = op.startswith("v_mfma")
        self.is_dot = op.startswith("v_dot")
        self.is_valu = op.startswith("v_") and not self.is_mfma
        self.is_trans = any(op.startswith(t) for t in TRANS)
        self.is_dpp = "_dpp" in op or " row_" in body or "quad_perm" in body
        self.is_permlane = op.startswith("v_permlane")
        self.is_readlane = op.startswith("v_readlane") or op.startswith("v_readfirstlane")
        self.is_vmem = op.startswith("buffer_") or op.startswith("global_")
        self.is_ds = op.startswith("ds_")
        self.is_store = self.is_vmem and ("store" in op or ("atomic" in op))
        self.is_wide_store = self.is_vmem and "store" in op and ("x4" in op or "x3" in op)
        self.is_salu = op.startswith("s_")
        self.writes, self.reads = [], []
        self.srcc = []
        self.srcab = []
        if self.is_mfma:
            self.writes = regs_of(ops[0])
            self.srcab = regs_of(ops[1]) + regs_of(ops[2])
            self.srcc = regs_of(ops[3])
            self.reads = self.srcab + self.srcc
        elif self.is_valu:
            if self.is_permlane:
                self.writes = regs_of(ops[0]) + regs_of(ops[1])
                self.reads = list(self.writes)
            else:
                self.writes = regs_of(ops[0])
                k = 1
                if op.startswith(("v_add_co", "v_sub_co", "v_addc_co", "v_subb_co", "v_subrev_co")):
                    self.writes += regs_of(ops[1])
                    k = 2
                for o in ops[k:]:
                    self.reads += regs_of(o)
                if op.startswith(("v_fmac", "v_dot2c", "v_pk_fmac")) or self.is_dpp:
                    self.reads += regs_of(ops[0])
                if op.startswith("v_dot2c"):
                    self.srcc = regs_of(ops[0])
                    self.srcab = regs_of(ops[1]) + regs_of(ops[2])
                elif self.is_dot:
                    self.srcc = regs_of(ops[3])
                    self.srcab = regs_of(ops[1]) + regs_of(ops[2])
                if op.startswith("v_cmpx"):
                    self.writes += [("s", 126), ("s", 127)]
        elif self.is_vmem:
            if "load" in op and " lds" not in body:
                self.writes = regs_of(ops[0])
                for o in ops[1:]:
                    self.reads += regs_of(o)
            elif "atomic" in op and " sc0" in body and op.startswith("global_"):
                self.writes = regs_of(ops[0])
                for o in ops[1:]:
                    self.reads += regs_of(o)
            else:
                for o in ops:
                    self.reads += regs_of(o)
                if "atomic" in op and " sc0" in body:
                    self.writes = regs_of(ops[0])
        elif self.is_ds:
            if op.startswith(("ds_read", "ds_bpermute", "ds_permute", "ds_swizzle")):
                self.writes = regs_of(ops[0])
                for o in ops[1:]:
                    self.reads += regs_of(o)
            else:
                for o in ops:
                    self.reads += regs_of(o)
        elif self.is_salu:
            if ops and not op.startswith(("s_cmp", "s_cbranch", "s_branch", "s_waitcnt", "s_nop", "s_barrier",
                                          "s_sleep", "s_setprio", "s_endpgm", "s_bitcmp")):
                self.writes = regs_of(ops[0])
                for o in ops[1:]:
                    self.reads += regs_of(o)
            else:
                for o in ops:
                    self.reads += regs_of(o)
        self.ws = 1
        if op == "s_nop":
            self.ws = int(ops[0], 0) + 1
        self.store_data = []
        if self.is_wide_store:
            self.store_data = regs_of(ops[0]) if op.startswith("buffer_") else regs_of(ops[1])


def need(prod, cons):
    n = 0
    pw = set(prod.writes)
    cr = set(cons.reads)
    cw = set(cons.writes)
    pwv = {r for r in pw if r[0] in "va"}
    pws = {r for r in pw if r[0] == "s"}
    if prod.is_mfma:
        passes = 4 if "16x16x32" in prod.op or "16x16x16" in prod.op else 8
        far = {4: 8, 8: 12}[passes]
        if cons.is_mfma:
            if pwv & set(cons.srcab):
                n = max(n, far)
            if pwv & set(cons.srcc):
                if set(cons.srcc) == pwv and cons.op == prod.op:
                    pass
                else:
                    n = max(n, {4: 6, 8: 10}[passes])
            elif pwv & cw:
                n = max(n, far)
        elif cons.is_valu or cons.is_vmem or cons.is_ds:
            if pwv & (cr | cw):
                n = max(n, far)
        if cons.is_valu and set(prod.srcc) & cw:
            n = max(n, {4: 3, 8: 7}[passes])
        return n
    if prod.is_valu:
        if prod.is_dot:
            if pwv & (cr | cw):
                if cons.is_dot and cons.op == prod.op and not (pwv & set(cons.srcab)):
                    pass
                else:
                    n = max(n, 3)
        if cons.is_mfma and pwv & cr:
            n = max(n, 2)
        if cons.is_valu and cons.is_dpp and pwv & cr:
            n = max(n, 2)
        if cons.is_permlane and pwv & cr:
            n = max(n, 2)
        if cons.is_readlane and pwv & cr:
            n = max(n, 1)
        if prod.is_trans and cons.is_valu and not cons.is_trans and pwv & (cr | cw):
            n = max(n, 1)
        if prod.is_trans and (cons.is_mfma or cons.is_vmem or cons.is_ds) and pwv & cr:
            n = max(n, 2)
        if pws:
            if cons.is_valu and pws & cr:
                n = max(n, 4 if cons.is_readlane else 2)
            if cons.is_vmem and pws & cr:
                n = max(n, 5)
            if cons.is_salu and pws & cr:
                n = max(n, 2)
            if ("s", 126) in pws:
                if cons.is_valu and cons.is_dpp:
                    n = max(n, 5)
                if cons.is_mfma or cons.is_readlane or cons.is_permlane:
                    n = max(n, 4)
    if prod.is_wide_store and set(prod.store_data) & cw:
        n = max(n, 2)
    if prod.is_salu and ("s", 126) in pw:
        if cons.is_valu and cons.is_dpp:
            n = max(n, 2)
        if cons.is_mfma:
            n = max(n, 2)
    return n


class Emitter:
    def __init__(self):
        self.lines = []
        self.hist = []
        self.vm = []
        self.nops = 0

    def raw(self, text):
        self.lines.append(text)

    def comment(self, text):
        self.lines.append("    ; " + text)

    def label(self, name):
        self.lines.append(name + ":")
        self.hist = []

    def fence(self, n=12):
        self.i("s_nop %d" % (n - 1))
        self.hist = []

    def i(self, text, tag=None):
        ins = Ins(text)
        dist = 0
        req = 0
        for p in reversed(self.hist):
            r = need(p, ins) - dist
            req = max(req, r)
            dist += p.ws
            if dist > 20:
                break
        if req > 0:
            nop = Ins("s_nop %d" % (req - 1))
            self.lines.append("    s_nop %d" % (req - 1))
            self.hist.append(nop)
            self.nops += req
        self.lines.append("    " + text)
        self.hist.append(ins)
        if len(self.hist) > 40:
            self.hist = self.hist[-40:]
        if ins.is_vmem:
            self.vm.append(tag if tag is not None else object())
        return ins

    def wait_vm(self, tag):
        if tag not in self.vm:
            return
        idx = self.vm.index(tag)
        n = len(self.vm) - 1 - idx
        assert n <= 63, n
        self.i("s_waitcnt vmcnt(%d)" % n)
        self.vm = self.vm[idx + 1:]

    def wait_vm_all(self):
        self.i("s_waitcnt vmcnt(0)")
        self.vm = []

    def text(self):
        return "\n".join(self.lines) + "\n"
```

```python
import sys, os, argparse
sys.path.insert(0, os.path.dirname(__file__))
from emit import Emitter

NAME = "concat_heads__sliding_block_cached__sliding_block_cached__decode"
HEADER = open("cdna_kernels/%s.s.ref" % NAME).read().split("; Override launch geometry")[0]

LOG2E = 0x3FB8AA3B
SCALE = 0x3DB504F3

PSTR = 528
L_QP = 0
L_QB = 4352
L_ML = 4608
L_OP = 4864
L_OB = 9216
L_YP = 9472
LDS_BYTES = 11520

WS_ML = 512 * 1024


def vr(b, n=4):
    return "v[%d:%d]" % (b, b + n - 1)


def gen(args):
    e = Emitter()
    i = e.i
    kvflag = " nt" if args.nt else ""
    wflag = " nt" if args.wnt else ""
    MASK, SEL, XD, QD = 8, 12, 20, 28
    AB = [32, 36]
    ACC = 40
    T = [44, 48]
    S = 52
    TMP = 60
    WB, KB = 64, 128

    e.raw(".globl main_kernel\n.p2align 8\n.type main_kernel,@function\nmain_kernel:")
    i("s_cmp_ge_u32 s2, 256")
    i("s_cbranch_scc1 L_main_end")
    i("s_and_b32 s60, s2, 7")
    i("s_lshl_b32 s60, s60, 3")
    i("s_lshr_b32 s61, s2, 5")
    i("s_add_u32 s60, s60, s61")
    i("s_lshr_b32 s61, s60, 5")
    i("s_mul_i32 s62, s61, 40")
    i("s_add_u32 s4, s0, s62")
    i("s_addc_u32 s5, s1, 0")
    i("s_load_dwordx8 s[8:15], s[4:5], 0")
    i("s_load_dwordx2 s[16:17], s[4:5], 32")
    i("s_load_dwordx2 s[24:25], s[0:1], 96")
    i("s_and_b32 s62, s60, 31")
    i("s_bfe_u32 s63, s2, 0x10004")
    i("s_bfe_u32 s64, s2, 0x10003")
    i("v_and_b32 v1, 63, v0")
    i("v_lshrrev_b32 v7, 6, v0")
    i("v_and_b32 v2, 15, v0")
    i("v_readfirstlane_b32 s3, v7")
    i("v_bfe_u32 v3, v0, 4, 2")
    for k in range(1, 32):
        i("s_mov_b32 s%d, %d" % (65 + k, k * 8192))
    i("s_movk_i32 s98, 0x1000")
    i("s_movk_i32 s99, 0x3000")

    def soff(v):
        if v == 0:
            return "0"
        if v == 4096:
            return "s98"
        if v == 12288:
            return "s99"
        assert v % 8192 == 0 and v // 8192 < 32, v
        return "s%d" % (65 + v // 8192)

    i("v_lshlrev_b32 v4, 4, v1")
    if args.order == "seq":
        i("v_lshl_add_u32 v4, v7, 10, v4")
    else:
        i("v_lshl_add_u32 v4, v7, 15, v4")
        i("v_add_u32 v63, 0x1000, v4")
    i("v_lshlrev_b32 v5, 4, v2")
    i("v_lshl_add_u32 v5, v3, 17, v5")
    i("v_lshl_add_u32 v5, v7, 19, v5")
    i("v_lshlrev_b32 v6, 4, v2")
    i("v_lshl_add_u32 v6, v3, 14, v6")
    i("v_and_b32 v60, 3, v7")
    i("v_lshl_add_u32 v6, v60, 8, v6")
    i("v_lshrrev_b32 v60, 2, v7")
    i("v_lshl_add_u32 v6, v60, 16, v6")
    i("v_lshlrev_b32 v61, 5, v3")
    i("v_lshl_add_u32 v61, v7, 7, v61")
    i("v_and_b32 v60, 1, v2")
    i("v_lshlrev_b32 v60, 4, v60")
    i("v_mov_b32 v62, 0xffff")
    i("v_lshlrev_b32 v62, v60, v62")
    i("v_lshrrev_b32 v60, 1, v2")
    for r in range(4):
        i("v_cmp_eq_u32 vcc, %d, v60" % r)
        i("v_cndmask_b32 v%d, 0, v62, vcc" % (MASK + r))
    i("s_mov_b32 s100, 0x0c0c0c0c")
    i("v_mov_b32 v60, 0x01000100")
    i("v_mov_b32 v62, 0x03020302")
    for r in range(4):
        i("v_bfi_b32 v%d, v%d, v60, s100" % (SEL + r, MASK + r))
        i("v_bfi_b32 v%d, v%d, v62, s100" % (SEL + 4 + r, MASK + r))
    i("s_lshl_b32 s18, s63, 5")
    i("s_add_u32 s18, s18, s62")
    i("s_lshl_b32 s18, s18, 21")
    i("s_lshl_b32 s19, s64, 18")
    i("s_add_u32 s18, s18, s19")
    i("s_add_u32 s18, s18, 0x180000")
    i("s_lshl_b32 s19, s62, 8")
    i("s_lshl_b32 s20, s62, 17")
    i("s_lshl_b32 s21, s63, 10")
    i("s_mov_b32 s30, 0x40000")
    i("s_mov_b32 s31, 0x20000")
    i("s_mov_b32 s34, 0x40000")
    i("s_mov_b32 s35, 0x20000")
    i("s_sub_u32 s38, 0x400000, s19")
    i("s_mov_b32 s39, 0x20000")
    i("s_mov_b32 s42, 0x20000")
    i("s_mov_b32 s43, 0x20000")
    i("s_movk_i32 s46, 0x400")
    i("s_mov_b32 s47, 0x20000")
    i("s_mov_b32 s50, 0x100000")
    i("s_mov_b32 s51, 0x20000")
    i("s_waitcnt lgkmcnt(0)")
    i("s_add_u32 s44, s8, s21")
    i("s_addc_u32 s45, s9, 0")
    i("s_add_u32 s36, s14, s19")
    i("s_addc_u32 s37, s15, 0")
    i("s_add_u32 s28, s10, s18")
    i("s_addc_u32 s29, s11, 0")
    i("buffer_load_dwordx4 %s, v61, s[44:47], 0 offen" % vr(XD), tag="x0")
    i("buffer_load_dwordx4 %s, v61, s[44:47], 0 offen offset:16" % vr(XD + 4), tag="x1")
    for k in range(16):
        i("buffer_load_dwordx4 %s, v5, s[36:39], %s offen%s" % (vr(WB + 4 * k), soff(k * 8192), wflag), tag=("wq", k))

    def kv_load(dst, srd, k, tag):
        if args.order == "seq":
            i("buffer_load_dwordx4 %s, v4, %s, %s offen%s" % (vr(dst), srd, soff(k * 8192), kvflag), tag=tag)
        else:
            v = "v63" if (k >> 2) & 1 else "v4"
            i("buffer_load_dwordx4 %s, %s, %s, %s offen offset:%d%s" % (
                vr(dst), v, srd, soff((k >> 3) * 8192), (k & 3) * 1024, kvflag), tag=tag)

    for k in range(32):
        kv_load(KB + 4 * k, "s[28:31]", k, ("k", k))
    i("s_add_u32 s32, s12, s18")
    i("s_addc_u32 s33, s13, 0")
    i("s_add_u32 s40, s16, s20")
    i("s_addc_u32 s41, s17, 0")
    i("s_mov_b32 s48, s24")
    i("s_mov_b32 s49, s25")

    vreg = {}

    def sel_mfma(k, src_dw, data, first):
        a = AB[k & 1]
        for r in range(4):
            i("v_perm_b32 v%d, v%d, v%d, v%d" % (a + r, src_dw + (k >> 1), src_dw + (k >> 1), SEL + 4 * (k & 1) + r))
        return a

    e.wait_vm("x1")
    for k in range(16):
        a = sel_mfma(k, XD, WB + 4 * k, k == 0)
        e.wait_vm(("wq", k))
        i("v_mfma_f32_16x16x32_bf16 %s, %s, %s, %s" % (vr(ACC), vr(a), vr(WB + 4 * k), "0" if k == 0 else vr(ACC)))
        vreg[k] = WB + 4 * k
        kv_load(WB + 4 * k, "s[32:35]", k, ("v", k))

    i("v_lshlrev_b32 v60, 5, v2")
    i("v_lshl_add_u32 v60, v3, 4, v60")
    i("s_mul_i32 s101, s3, %d" % PSTR)
    i("v_add_u32 v60, s101, v60")
    i("v_and_b32 v61, 3, v0")
    i("v_mul_u32_u24 v61, %d, v61" % (2 * PSTR))
    i("v_lshrrev_b32 v62, 2, v0")
    i("v_lshl_add_u32 v61, v62, 2, v61")
    i("v_lshlrev_b32 v62, 1, v62")

    def reduce8(pbase, qbase):
        i("s_mov_b32 exec_hi, 0")
        i("ds_write_b128 v60, %s offset:%d" % (vr(ACC), pbase))
        i("s_mov_b64 exec, -1")
        i("s_waitcnt lgkmcnt(0)")
        i("s_barrier")
        assert pbase % 4 == 0
        i("v_add_u32 v44, %d, v61" % pbase)
        i("ds_read2_b32 v[46:47], v44 offset0:0 offset1:%d" % (PSTR // 4))
        i("s_waitcnt lgkmcnt(0)")
        i("v_add_f32 v46, v46, v47")
        i("v_add_f32_dpp v46, v46, v46 quad_perm:[1,0,3,2] row_mask:0xf bank_mask:0xf")
        i("v_add_f32_dpp v46, v46, v46 quad_perm:[2,3,0,1] row_mask:0xf bank_mask:0xf")
        i("v_cvt_pk_bf16_f32 v46, v46, v46")
        i("ds_write_b16 v62, v46 offset:%d" % qbase)
        i("s_waitcnt lgkmcnt(0)")
        i("s_barrier")

    reduce8(L_QP, L_QB)
    i("v_lshlrev_b32 v44, 4, v2")
    i("ds_read_b128 %s, v44 offset:%d" % (vr(QD), L_QB))
    i("s_waitcnt lgkmcnt(0)")

    woreg = {}

    def wo_load(dst, k):
        i("buffer_load_dwordx4 %s, v6, s[40:43], %s offen offset:%d%s" % (
            vr(dst), soff((k >> 2) * 4096), (k & 3) * 1024, wflag), tag=("wo", k))
        woreg[k] = dst

    def merge(a):
        t = T[a & 1]
        i("v_add_f32_dpp v%d, v%d, v%d row_ror:8 row_mask:0xf bank_mask:0x3" % (t, t, t))
        i("v_add_f32_dpp v%d, v%d, v%d row_ror:8 row_mask:0xf bank_mask:0x3" % (t + 2, t + 2, t + 2))
        i("v_add_f32_dpp v%d, v%d, v%d row_ror:8 row_mask:0xf bank_mask:0xc" % (t, t + 1, t + 1))
        i("v_add_f32_dpp v%d, v%d, v%d row_ror:8 row_mask:0xf bank_mask:0xc" % (t + 2, t + 3, t + 3))
        s = S + a
        i("v_add_f32_dpp v%d, v%d, v%d row_half_mirror row_mask:0xf bank_mask:0x5" % (s, t, t))
        i("v_add_f32_dpp v%d, v%d, v%d row_half_mirror row_mask:0xf bank_mask:0xa" % (s, t + 2, t + 2))
        i("v_add_f32_dpp v%d, v%d, v%d quad_perm:[1,0,3,2] row_mask:0xf bank_mask:0xf" % (s, s, s))
        i("v_add_f32_dpp v%d, v%d, v%d quad_perm:[2,3,0,1] row_mask:0xf bank_mask:0xf" % (s, s, s))

    for a in range(8):
        t = T[a & 1]
        e.wait_vm(("k", 4 * a + 3))
        for d in range(4):
            for q in range(4):
                kr = KB + 4 * (4 * a + q) + d
                i("v_dot2_f32_bf16 v%d, v%d, v%d, %s" % (t + q, kr, QD + d, "0" if d == 0 else "v%d" % (t + q)))
        for q in range(4):
            k = 4 * a + q
            if k < 16:
                vreg[16 + k] = KB + 4 * k
                kv_load(KB + 4 * k, "s[32:35]", 16 + k, ("v", 16 + k))
            else:
                wo_load(KB + 4 * k, k - 16)
        merge(a)

    i("s_mov_b32 s100, 0xffff0000")
    i("s_mov_b32 s101, 0x%x" % SCALE)
    i("s_mov_b32 s97, 0x%x" % LOG2E)
    for a in range(8):
        i("v_cvt_pk_bf16_f32 v%d, v%d, v%d" % (S + a, S + a, S + a))
    for a in range(8):
        i("v_and_b32 v%d, s100, v%d" % (S + a, S + a))
    for a in range(8):
        i("v_mul_f32 v%d, s101, v%d" % (S + a, S + a))
    for a in range(8):
        i("v_cvt_pk_bf16_f32 v%d, v%d, v%d" % (S + a, S + a, S + a))
    for a in range(8):
        i("v_and_b32 v%d, s100, v%d" % (S + a, S + a))
    i("v_max3_f32 v44, v%d, v%d, v%d" % (S, S + 1, S + 2))
    i("v_max3_f32 v45, v%d, v%d, v%d" % (S + 3, S + 4, S + 5))
    i("v_max3_f32 v44, v44, v%d, v%d" % (S + 6, S + 7))
    i("v_max_f32 v44, v44, v45")

    def allred(op, r, t):
        i("%s_dpp v%d, v%d, v%d row_ror:4 row_mask:0xf bank_mask:0xf" % (op, r, r, r))
        i("%s_dpp v%d, v%d, v%d row_ror:8 row_mask:0xf bank_mask:0xf" % (op, r, r, r))
        i("v_mov_b32 v%d, v%d" % (t, r))
        i("v_permlane16_swap_b32 v%d, v%d" % (r, t))
        i("%s v%d, v%d, v%d" % (op, r, r, t))
        i("v_mov_b32 v%d, v%d" % (t, r))
        i("v_permlane32_swap_b32 v%d, v%d" % (r, t))
        i("%s v%d, v%d, v%d" % (op, r, r, t))

    allred("v_max_f32", 44, 45)
    for a in range(8):
        i("v_sub_f32 v%d, v%d, v44" % (S + a, S + a))
    for a in range(8):
        i("v_mul_f32 v%d, s97, v%d" % (S + a, S + a))
    for a in range(8):
        i("v_exp_f32 v%d, v%d" % (S + a, S + a))
    i("v_add_f32 v45, v%d, v%d" % (S, S + 1))
    i("v_add_f32 v46, v%d, v%d" % (S + 2, S + 3))
    i("v_add_f32 v47, v%d, v%d" % (S + 4, S + 5))
    i("v_add_f32 v48, v%d, v%d" % (S + 6, S + 7))
    i("v_add_f32 v45, v45, v46")
    i("v_add_f32 v47, v47, v48")
    i("v_add_f32 v45, v45, v47")
    allred("v_add_f32", 45, 46)
    for a in range(8):
        i("v_cvt_pk_bf16_f32 v%d, v%d, v%d" % (S + a, S + a, S + a))
    i("s_lshl_b32 s101, s3, 3")
    i("v_mov_b32 v46, s101")
    i("ds_write_b64 v46, v[44:45] offset:%d" % L_ML)
    i("s_waitcnt lgkmcnt(0)")
    i("s_barrier")
    i("v_and_b32 v46, 7, v0")
    i("v_lshlrev_b32 v46, 3, v46")
    i("ds_read_b64 v[46:47], v46 offset:%d" % L_ML)
    i("s_waitcnt lgkmcnt(0)")
    i("v_mov_b32 v48, v46")
    i("v_max_f32_dpp v48, v48, v48 quad_perm:[1,0,3,2] row_mask:0xf bank_mask:0xf")
    i("v_max_f32_dpp v48, v48, v48 quad_perm:[2,3,0,1] row_mask:0xf bank_mask:0xf")
    i("v_max_f32_dpp v48, v48, v48 row_half_mirror row_mask:0xf bank_mask:0xf")
    i("v_sub_f32 v46, v46, v48")
    i("v_sub_f32 v44, v44, v48")
    i("v_mul_f32 v46, s97, v46")
    i("v_mul_f32 v44, s97, v44")
    i("v_exp_f32 v46, v46")
    i("v_exp_f32 v44, v44")
    i("v_mul_f32 v49, v46, v47")
    i("v_add_f32_dpp v49, v49, v49 quad_perm:[1,0,3,2] row_mask:0xf bank_mask:0xf")
    i("v_add_f32_dpp v49, v49, v49 quad_perm:[2,3,0,1] row_mask:0xf bank_mask:0xf")
    i("v_add_f32_dpp v49, v49, v49 row_half_mirror row_mask:0xf bank_mask:0xf")
    i("s_lshl_b32 s100, s61, 1")
    i("s_add_u32 s100, s100, s63")
    i("s_lshl_b32 s100, s100, 5")
    i("s_add_u32 s100, s100, s62")
    i("s_lshl_b32 s100, s100, 1")
    i("s_add_u32 s100, s100, s64")
    i("s_lshl_b32 s101, s100, 3")
    i("s_add_u32 s101, s101, %d" % WS_ML)
    i("v_mov_b32 v50, 0")
    i("v_cmp_eq_u32 vcc, 0, v0")
    i("s_and_saveexec_b64 s[6:7], vcc")
    i("s_cbranch_execz L_noml")
    i("buffer_store_dwordx2 v[48:49], v50, s[48:51], s101 offen")
    e.vm.pop()
    e.raw("L_noml:")
    i("s_mov_b64 exec, -1")

    bank = [0, 2, 1, 3]
    for k in range(32):
        a = AB[k & 1]
        for r in range(4):
            i("v_and_b32_dpp v%d, v%d, v%d row_newbcast:%d row_mask:0xf bank_mask:0xf" % (
                a + r, S + (k >> 2), MASK + r, 4 * bank[k & 3]))
        e.wait_vm(("v", k))
        i("v_mfma_f32_16x16x32_bf16 %s, %s, %s, %s" % (vr(ACC), vr(a), vr(vreg[k]), "0" if k == 0 else vr(ACC)))
    for r in range(4):
        i("v_mul_f32 v%d, v44, v%d" % (ACC + r, ACC + r))
    reduce8(L_OP, L_OB)
    i("s_lshr_b32 s101, s3, 2")
    i("s_lshl_b32 s101, s101, 7")
    i("v_lshlrev_b32 v44, 5, v3")
    i("v_add_u32 v44, s101, v44")
    i("ds_read_b128 %s, v44 offset:%d" % (vr(XD), L_OB))
    i("ds_read_b128 %s, v44 offset:%d" % (vr(XD + 4), L_OB + 16))
    i("s_waitcnt lgkmcnt(0)")
    for k in range(16):
        a = sel_mfma(k, XD, woreg[k], k == 0)
        e.wait_vm(("wo", k))
        i("v_mfma_f32_16x16x32_bf16 %s, %s, %s, %s" % (vr(ACC), vr(a), vr(woreg[k]), "0" if k == 0 else vr(ACC)))
    i("v_lshlrev_b32 v44, 5, v2")
    i("v_lshl_add_u32 v44, v3, 4, v44")
    i("s_and_b32 s101, s3, 3")
    i("s_lshl_b32 s101, s101, 9")
    i("v_add_u32 v44, s101, v44")
    i("s_mov_b32 exec_hi, 0")
    i("s_cmp_lt_u32 s3, 4")
    i("s_cbranch_scc1 L_ylow")
    i("ds_write_b128 v44, %s offset:%d" % (vr(ACC), L_YP))
    i("s_waitcnt lgkmcnt(0)")
    i("s_barrier")
    i("s_endpgm")
    e.raw("L_ylow:")
    i("s_barrier")
    i("ds_read_b128 v[48:51], v44 offset:%d" % L_YP)
    i("s_lshl_b32 s101, s100, 11")
    i("s_waitcnt lgkmcnt(0)")
    e.fence(8)
    for r in range(4):
        i("v_add_f32 v%d, v%d, v%d" % (ACC + r, ACC + r, 48 + r))
    i("buffer_store_dwordx4 %s, v44, s[48:51], s101 offen" % vr(ACC))
    e.raw("L_main_end:")
    i("s_endpgm")

    e.hist = []
    e.vm = []
    e.raw(".globl fin_kernel\n.p2align 8\n.type fin_kernel,@function\nfin_kernel:")
    i("s_cmp_ge_u32 s2, 256")
    i("s_cbranch_scc1 L_fin_end")
    i("s_load_dwordx2 s[8:9], s[0:1], 80")
    i("s_load_dwordx2 s[12:13], s[0:1], 96")
    i("s_lshr_b32 s3, s2, 6")
    i("s_and_b32 s4, s2, 63")
    i("s_movk_i32 s10, 0x1000")
    i("s_mov_b32 s11, 0x20000")
    i("s_mov_b32 s14, 0x100000")
    i("s_mov_b32 s15, 0x20000")
    i("s_lshl_b32 s5, s3, 17")
    i("s_lshl_b32 s6, s4, 5")
    i("s_add_u32 s5, s5, s6")
    i("s_lshl_b32 s6, s3, 9")
    i("s_add_u32 s6, s6, %d" % WS_ML)
    i("v_lshlrev_b32 v1, 11, v0")
    i("v_lshlrev_b32 v2, 3, v0")
    i("s_mov_b32 s16, 0x%x" % LOG2E)
    i("s_and_b32 s17, s3, 1")
    i("s_lshl_b32 s17, s17, 11")
    i("s_lshr_b32 s18, s3, 1")
    i("s_lshl_b32 s18, s18, 10")
    i("s_add_u32 s17, s17, s18")
    i("s_lshl_b32 s18, s4, 4")
    i("s_add_u32 s17, s17, s18")
    i("v_bfe_u32 v3, v0, 4, 1")
    i("v_lshlrev_b32 v3, 1, v3")
    i("v_bfe_u32 v4, v0, 5, 1")
    i("v_add_u32 v3, v3, v4")
    i("v_bfe_u32 v4, v0, 3, 1")
    i("v_lshl_add_u32 v3, v4, 2, v3")
    i("v_lshlrev_b32 v3, 1, v3")
    i("s_waitcnt lgkmcnt(0)")
    i("buffer_load_dwordx2 v[4:5], v2, s[12:15], s6 offen")
    i("buffer_load_dwordx4 v[8:11], v1, s[12:15], s5 offen")
    i("buffer_load_dwordx4 v[12:15], v1, s[12:15], s5 offen offset:16")
    i("s_waitcnt vmcnt(2)")
    i("v_max_f32_dpp v6, v4, v4 quad_perm:[1,0,3,2] row_mask:0xf bank_mask:0xf")
    i("v_sub_f32 v4, v4, v6")
    i("v_mul_f32 v4, s16, v4")
    i("v_exp_f32 v4, v4")
    i("v_mul_f32 v5, v5, v4")
    i("v_add_f32_dpp v5, v5, v5 quad_perm:[1,0,3,2] row_mask:0xf bank_mask:0xf")
    i("v_rcp_f32 v5, v5")
    i("v_mul_f32 v4, v4, v5")
    i("s_waitcnt vmcnt(0)")
    for r in range(8):
        i("v_mul_f32 v%d, v4, v%d" % (8 + r, 8 + r))
    for r in range(0, 8, 2):
        i("v_permlane32_swap_b32 v%d, v%d" % (8 + r, 9 + r))
    for r in range(0, 8, 2):
        i("v_add_f32 v%d, v%d, v%d" % (8 + r, 8 + r, 9 + r))
    i("v_permlane16_swap_b32 v8, v10")
    i("v_permlane16_swap_b32 v12, v14")
    i("v_add_f32 v8, v8, v10")
    i("v_add_f32 v12, v12, v14")
    i("v_add_f32_dpp v8, v8, v8 row_ror:8 row_mask:0xf bank_mask:0x3")
    i("v_add_f32_dpp v8, v12, v12 row_ror:8 row_mask:0xf bank_mask:0xc")
    i("v_add_f32_dpp v8, v8, v8 row_half_mirror row_mask:0xf bank_mask:0xf")
    i("v_add_f32_dpp v8, v8, v8 quad_perm:[1,0,3,2] row_mask:0xf bank_mask:0xf")
    i("v_add_f32_dpp v8, v8, v8 quad_perm:[2,3,0,1] row_mask:0xf bank_mask:0xf")
    i("v_cvt_pk_bf16_f32 v8, v8, v8")
    i("v_and_b32 v4, 7, v0")
    i("v_cmp_eq_u32 vcc, 0, v4")
    i("s_and_saveexec_b64 s[6:7], vcc")
    i("buffer_store_short v8, v3, s[8:11], s17 offen")
    e.raw("L_fin_end:")
    i("s_endpgm")

    out = HEADER
    out += "; @launch kernel=main_kernel grid=(256,1,1) block=(512,1,1) lds=%d\n" % LDS_BYTES
    out += "; @launch kernel=fin_kernel grid=(256,1,1) block=(64,1,1) lds=0\n"
    out += '.amdgcn_target "amdgcn-amd-amdhsa--gfx950"\n.text\n'
    out += e.text()
    out += '.section .rodata,"a"\n'
    for name, nv, ns in (("main_kernel", 256, 102), ("fin_kernel", 16, 24)):
        out += ".p2align 6\n.amdhsa_kernel %s\n" % name
        out += "  .amdhsa_next_free_vgpr %d\n  .amdhsa_next_free_sgpr %d\n  .amdhsa_accum_offset %d\n" % (nv, ns, nv)
        out += "  .amdhsa_group_segment_fixed_size 0\n  .amdhsa_kernarg_size 104\n"
        out += "  .amdhsa_user_sgpr_count 2\n  .amdhsa_user_sgpr_kernarg_segment_ptr 1\n"
        out += "  .amdhsa_system_sgpr_workgroup_id_x 1\n.end_amdhsa_kernel\n"
    return out


if __name__ == "__main__":
    ap = argparse.ArgumentParser()
    ap.add_argument("-o", default="cdna_kernels/%s.s" % NAME)
    ap.add_argument("--nt", type=int, default=1)
    ap.add_argument("--wnt", type=int, default=0)
    ap.add_argument("--order", default="seq")
    args = ap.parse_args()
    open(args.o, "w").write(gen(args))
```

```python
import sys, os, argparse
sys.path.insert(0, os.path.dirname(__file__))
from emit import Emitter

NAME = "concat_heads__sliding_block_cached__sliding_block_cached__decode"
HEADER = open("cdna_kernels/%s.s.ref" % NAME).read().split("; Override launch geometry")[0]

LOG2E = 0x3FB8AA3B
SCALE = 0x3DB504F3

PSTR = 528
L_QP = 0
L_QB = 4352
L_ML = 4608
L_OP = 4864
L_OB = 9216
L_YP = 9472
LDS_BYTES = 11520

WS_ML = 512 * 1024
STAMP_OFF = 8 << 20
SPIN_MAX = 1 << 16


def vr(b, n=4):
    return "v[%d:%d]" % (b, b + n - 1)


def gen(args):
    e = Emitter()
    i = e.i
    kvflag = " nt" if args.nt else ""
    wflag = " nt" if args.wnt else ""
    MASK, SEL, XD, QD = 8, 12, 20, 28
    AB = [32, 36]
    ACC = 40
    T = [44, 48]
    S = 52
    RB = 64
    KN = NAME + "_kernel"

    def stamp(k):
        if args.stamps:
            i("s_memrealtime s[%d:%d]" % (84 + 2 * k, 85 + 2 * k))

    e.raw(".globl %s\n.p2align 8\n.type %s,@function\n%s:" % (KN, KN, KN))
    i("s_cmp_ge_u32 s2, 256")
    i("s_cbranch_scc1 L_end")
    stamp(0)
    i("s_and_b32 s60, s2, 7")
    i("s_lshl_b32 s60, s60, 3")
    i("s_lshr_b32 s61, s2, 5")
    i("s_add_u32 s60, s60, s61")
    i("s_lshr_b32 s61, s60, 5")
    i("s_mul_i32 s62, s61, 40")
    i("s_add_u32 s4, s0, s62")
    i("s_addc_u32 s5, s1, 0")
    i("s_load_dwordx8 s[8:15], s[4:5], 0")
    i("s_load_dwordx2 s[16:17], s[4:5], 32")
    i("s_load_dwordx4 s[20:23], s[0:1], 80")
    i("s_load_dwordx2 s[24:25], s[0:1], 96")
    i("s_and_b32 s62, s60, 31")
    i("s_bfe_u32 s63, s2, 0x10004")
    i("s_bfe_u32 s64, s2, 0x10003")
    i("v_and_b32 v1, 63, v0")
    i("v_lshrrev_b32 v7, 6, v0")
    i("v_and_b32 v2, 15, v0")
    i("v_readfirstlane_b32 s3, v7")
    i("v_bfe_u32 v3, v0, 4, 2")
    i("s_lshr_b32 s65, s2, 3")
    i("s_mul_i32 s65, s65, %d" % args.rot)
    for a in range(8):
        i("s_add_u32 s%d, s65, %d" % (66 + a, a))
        i("s_and_b32 s%d, s%d, 7" % (66 + a, 66 + a))
        i("s_lshl_b32 s%d, s%d, 15" % (66 + a, 66 + a))
    i("s_movk_i32 s74, 0x1000")
    i("s_movk_i32 s75, 0x2000")
    i("s_movk_i32 s76, 0x3000")
    i("v_lshlrev_b32 v4, 4, v1")
    i("v_lshl_add_u32 v4, v7, 12, v4")
    i("v_lshlrev_b32 v5, 4, v2")
    i("v_lshl_add_u32 v5, v3, 17, v5")
    i("v_lshl_add_u32 v5, v7, 19, v5")
    i("v_lshlrev_b32 v6, 4, v2")
    i("v_lshl_add_u32 v6, v3, 14, v6")
    i("v_and_b32 v60, 3, v7")
    i("v_lshl_add_u32 v6, v60, 8, v6")
    i("v_lshrrev_b32 v60, 2, v7")
    i("v_lshl_add_u32 v6, v60, 16, v6")
    i("v_lshlrev_b32 v61, 5, v3")
    i("v_lshl_add_u32 v61, v7, 7, v61")
    i("s_lshl_b32 s18, s63, 5")
    i("s_add_u32 s18, s18, s62")
    i("s_lshl_b32 s18, s18, 21")
    i("s_lshl_b32 s19, s64, 18")
    i("s_add_u32 s18, s18, s19")
    i("s_add_u32 s18, s18, 0x180000")
    i("s_lshl_b32 s19, s62, 8")
    i("s_lshl_b32 s26, s62, 17")
    i("s_lshl_b32 s27, s63, 10")
    i("s_mov_b32 s30, 0x40000")
    i("s_mov_b32 s31, 0x20000")
    i("s_mov_b32 s34, 0x40000")
    i("s_mov_b32 s35, 0x20000")
    i("s_sub_u32 s38, 0x400000, s19")
    i("s_mov_b32 s39, 0x20000")
    i("s_mov_b32 s42, 0x20000")
    i("s_mov_b32 s43, 0x20000")
    i("s_movk_i32 s46, 0x400")
    i("s_mov_b32 s47, 0x20000")
    i("s_mov_b32 s50, 0x1000000")
    i("s_mov_b32 s51, 0x20000")
    i("s_movk_i32 s54, 0x1000")
    i("s_mov_b32 s55, 0x20000")
    i("s_movk_i32 s58, 0x100")
    i("s_mov_b32 s59, 0x20000")
    i("s_lshl_b32 s77, s61, 1")
    i("s_add_u32 s77, s77, s63")
    i("s_lshl_b32 s78, s62, 1")
    i("s_add_u32 s78, s78, s64")
    i("s_lshl_b32 s79, s77, 17")
    i("s_lshl_b32 s80, s78, %d" % (5 if args.ytr else 11))
    i("s_add_u32 s79, s79, s80")
    i("s_lshl_b32 s80, s77, 6")
    i("s_add_u32 s80, s80, s78")
    i("s_lshl_b32 s80, s80, 3")
    i("s_add_u32 s80, s80, %d" % WS_ML)
    i("s_mov_b32 s81, 0")
    i("s_waitcnt lgkmcnt(0)")
    i("s_add_u32 s44, s8, s27")
    i("s_addc_u32 s45, s9, 0")
    i("s_add_u32 s36, s14, s19")
    i("s_addc_u32 s37, s15, 0")
    i("s_add_u32 s28, s10, s18")
    i("s_addc_u32 s29, s11, 0")
    i("s_mov_b32 s48, s24")
    i("s_mov_b32 s49, s25")
    i("s_mov_b32 s56, s22")
    i("s_mov_b32 s57, s23")
    i("s_cmp_lg_u32 s3, 7")
    i("s_cbranch_scc1 L_nopoison")
    for r in range(4):
        i("v_mov_b32 v%d, -1" % (44 + r))
    if args.ytr:
        i("v_lshlrev_b32 v48, 11, v1")
    else:
        i("v_lshlrev_b32 v48, 5, v1")
    i("v_mov_b32 v49, 0")
    i("buffer_store_dwordx4 v[44:47], v48, s[48:51], s79 offen sc1")
    i("buffer_store_dwordx4 v[44:47], v48, s[48:51], s79 offen offset:16 sc1")
    i("buffer_store_dwordx2 v[44:45], v49, s[48:51], s80 offen sc1")
    e.vm = []
    e.raw("L_nopoison:")
    D = args.depth
    seq = [("wq", k) for k in range(16)] + [("k", k) for k in range(32)] + [("v", k) for k in range(32)] + \
          [("wo", k) for k in range(16)]
    reg = {t: RB + 4 * (n % D) for n, t in enumerate(seq)}
    state = {"next": 0}

    def issue():
        n = state["next"]
        if n >= len(seq):
            return
        state["next"] = n + 1
        t = seq[n]
        kind, k = t
        dst = vr(reg[t])
        if kind == "wq":
            i("buffer_load_dwordx4 %s, v5, s[36:39], s81 offen%s" % (dst, wflag), tag=t)
            if k < 15:
                i("s_add_u32 s81, s81, 0x2000")
        elif kind in "kv":
            i("buffer_load_dwordx4 %s, v4, %s, s%d offen offset:%d%s" % (
                dst, "s[28:31]" if kind == "k" else "s[32:35]", 66 + (k >> 2), (k & 3) * 1024, kvflag), tag=t)
        else:
            so = ["0", "s74", "s75", "s76"][k >> 2]
            i("buffer_load_dwordx4 %s, v6, s[40:43], %s offen offset:%d%s" % (dst, so, (k & 3) * 1024, wflag), tag=t)

    i("buffer_load_dwordx4 %s, v61, s[44:47], 0 offen" % vr(XD), tag="x0")
    i("buffer_load_dwordx4 %s, v61, s[44:47], 0 offen offset:16" % vr(XD + 4), tag="x1")
    for n in range(D):
        issue()
        if n == 15 and args.wbar:
            i("s_barrier")
    i("s_add_u32 s32, s12, s18")
    i("s_addc_u32 s33, s13, 0")
    i("s_add_u32 s40, s16, s26")
    i("s_addc_u32 s41, s17, 0")
    i("s_mov_b32 s52, s20")
    i("s_mov_b32 s53, s21")
    i("v_and_b32 v60, 1, v2")
    i("v_lshlrev_b32 v60, 4, v60")
    i("v_mov_b32 v62, 0xffff")
    i("v_lshlrev_b32 v62, v60, v62")
    i("v_lshrrev_b32 v60, 1, v2")
    for r in range(4):
        i("v_cmp_eq_u32 vcc, %d, v60" % r)
        i("v_cndmask_b32 v%d, 0, v62, vcc" % (MASK + r))
    i("s_mov_b32 s100, 0x0c0c0c0c")
    i("v_mov_b32 v60, 0x01000100")
    i("v_mov_b32 v62, 0x03020302")
    for r in range(4):
        i("v_bfi_b32 v%d, v%d, v60, s100" % (SEL + r, MASK + r))
        i("v_bfi_b32 v%d, v%d, v62, s100" % (SEL + 4 + r, MASK + r))

    vreg = {}

    def sel_a(k, src_dw):
        a = AB[k & 1]
        for r in range(4):
            i("v_perm_b32 v%d, v%d, v%d, v%d" % (a + r, src_dw + (k >> 1), src_dw + (k >> 1), SEL + 4 * (k & 1) + r))
        return a

    e.wait_vm("x1")
    i("s_cmp_lg_u32 s3, 7")
    i("s_cbranch_scc1 L_nosignal")
    i("v_mov_b32 v48, 1")
    i("v_mov_b32 v49, 0")
    i("s_mov_b64 exec, 1")
    i("buffer_atomic_add v48, v49, s[56:59], 0 offen sc1")
    e.vm.pop()
    i("s_mov_b64 exec, -1")
    e.raw("L_nosignal:")
    for k in range(16):
        a = sel_a(k, XD)
        e.wait_vm(("wq", k))
        i("v_mfma_f32_16x16x32_bf16 %s, %s, %s, %s" % (vr(ACC), vr(a), vr(reg[("wq", k)]), "0" if k == 0 else vr(ACC)))
        issue()

    i("v_lshlrev_b32 v60, 5, v2")
    i("v_lshl_add_u32 v60, v3, 4, v60")
    i("s_mul_i32 s101, s3, %d" % PSTR)
    i("v_add_u32 v60, s101, v60")
    i("v_and_b32 v61, 3, v0")
    i("v_mul_u32_u24 v61, %d, v61" % (2 * PSTR))
    i("v_lshrrev_b32 v62, 2, v0")
    i("v_lshl_add_u32 v61, v62, 2, v61")
    i("v_lshlrev_b32 v62, 1, v62")

    def reduce8(pbase, qbase, mid=None):
        i("v_add_u32 v63, %d, v61" % pbase)
        i("s_mov_b32 exec_hi, 0")
        i("ds_write_b128 v60, %s offset:%d" % (vr(ACC), pbase))
        i("s_mov_b32 exec_hi, -1")
        if mid:
            mid()
        i("s_waitcnt lgkmcnt(0)")
        i("s_barrier")
        i("ds_read2_b32 v[46:47], v63 offset0:0 offset1:%d" % (PSTR // 4))
        i("s_waitcnt lgkmcnt(0)")
        i("v_add_f32 v46, v46, v47")
        i("v_add_f32_dpp v46, v46, v46 quad_perm:[1,0,3,2] row_mask:0xf bank_mask:0xf")
        i("v_add_f32_dpp v46, v46, v46 quad_perm:[2,3,0,1] row_mask:0xf bank_mask:0xf")
        i("v_cvt_pk_bf16_f32 v46, v46, v46")
        i("ds_write_b16 v62, v46 offset:%d" % qbase)
        i("s_waitcnt lgkmcnt(0)")
        i("s_barrier")

    reduce8(L_QP, L_QB)
    i("v_lshlrev_b32 v44, 4, v2")
    i("ds_read_b128 %s, v44 offset:%d" % (vr(QD), L_QB))
    i("s_waitcnt lgkmcnt(0)")
    if args.st1 == "q":
        stamp(1)

    def merge(a):
        t = T[a & 1]
        i("v_add_f32_dpp v%d, v%d, v%d row_ror:8 row_mask:0xf bank_mask:0x3" % (t, t, t))
        i("v_add_f32_dpp v%d, v%d, v%d row_ror:8 row_mask:0xf bank_mask:0x3" % (t + 2, t + 2, t + 2))
        i("v_add_f32_dpp v%d, v%d, v%d row_ror:8 row_mask:0xf bank_mask:0xc" % (t, t + 1, t + 1))
        i("v_add_f32_dpp v%d, v%d, v%d row_ror:8 row_mask:0xf bank_mask:0xc" % (t + 2, t + 3, t + 3))
        s = S + a
        i("v_add_f32_dpp v%d, v%d, v%d row_half_mirror row_mask:0xf bank_mask:0x5" % (s, t, t))
        i("v_add_f32_dpp v%d, v%d, v%d row_half_mirror row_mask:0xf bank_mask:0xa" % (s, t + 2, t + 2))
        i("v_add_f32_dpp v%d, v%d, v%d quad_perm:[1,0,3,2] row_mask:0xf bank_mask:0xf" % (s, s, s))
        i("v_add_f32_dpp v%d, v%d, v%d quad_perm:[2,3,0,1] row_mask:0xf bank_mask:0xf" % (s, s, s))

    for a in range(8):
        t = T[a & 1]
        e.wait_vm(("k", 4 * a + 3))
        for d in range(4):
            for q in range(4):
                kr = reg[("k", 4 * a + q)] + d
                i("v_dot2_f32_bf16 v%d, v%d, v%d, %s" % (t + q, kr, QD + d, "0" if d == 0 else "v%d" % (t + q)))
        for q in range(4):
            issue()
        merge(a)

    i("s_mov_b32 s100, 0xffff0000")
    i("s_mov_b32 s101, 0x%x" % SCALE)
    i("s_mov_b32 s97, 0x%x" % LOG2E)
    for a in range(8):
        i("v_cvt_pk_bf16_f32 v%d, v%d, v%d" % (S + a, S + a, S + a))
    for a in range(8):
        i("v_and_b32 v%d, s100, v%d" % (S + a, S + a))
    for a in range(8):
        i("v_mul_f32 v%d, s101, v%d" % (S + a, S + a))
    for a in range(8):
        i("v_cvt_pk_bf16_f32 v%d, v%d, v%d" % (S + a, S + a, S + a))
    for a in range(8):
        i("v_and_b32 v%d, s100, v%d" % (S + a, S + a))
    i("v_max3_f32 v44, v%d, v%d, v%d" % (S, S + 1, S + 2))
    i("v_max3_f32 v45, v%d, v%d, v%d" % (S + 3, S + 4, S + 5))
    i("v_max3_f32 v44, v44, v%d, v%d" % (S + 6, S + 7))
    i("v_max_f32 v44, v44, v45")

    def allred(op, r, t):
        i("%s_dpp v%d, v%d, v%d row_ror:4 row_mask:0xf bank_mask:0xf" % (op, r, r, r))
        i("%s_dpp v%d, v%d, v%d row_ror:8 row_mask:0xf bank_mask:0xf" % (op, r, r, r))
        i("v_mov_b32 v%d, v%d" % (t, r))
        i("v_permlane16_swap_b32 v%d, v%d" % (r, t))
        i("%s v%d, v%d, v%d" % (op, r, r, t))
        i("v_mov_b32 v%d, v%d" % (t, r))
        i("v_permlane32_swap_b32 v%d, v%d" % (r, t))
        i("%s v%d, v%d, v%d" % (op, r, r, t))

    allred("v_max_f32", 44, 45)
    for a in range(8):
        i("v_sub_f32 v%d, v%d, v44" % (S + a, S + a))
    for a in range(8):
        i("v_mul_f32 v%d, s97, v%d" % (S + a, S + a))
    for a in range(8):
        i("v_exp_f32 v%d, v%d" % (S + a, S + a))
    i("v_add_f32 v45, v%d, v%d" % (S, S + 1))
    i("v_add_f32 v46, v%d, v%d" % (S + 2, S + 3))
    i("v_add_f32 v47, v%d, v%d" % (S + 4, S + 5))
    i("v_add_f32 v48, v%d, v%d" % (S + 6, S + 7))
    i("v_add_f32 v45, v45, v46")
    i("v_add_f32 v47, v47, v48")
    i("v_add_f32 v45, v45, v47")
    allred("v_add_f32", 45, 46)
    i("s_lshl_b32 s101, s3, 3")
    i("v_mov_b32 v46, s101")
    i("ds_write_b64 v46, v[44:45] offset:%d" % L_ML)
    for a in range(8):
        i("v_cvt_pk_bf16_f32 v%d, v%d, v%d" % (S + a, S + a, S + a))
    i("v_and_b32 v46, 7, v0")
    i("v_lshlrev_b32 v46, 3, v46")
    i("s_waitcnt lgkmcnt(0)")
    i("s_barrier")
    stamp(2)
    i("ds_read_b64 v[46:47], v46 offset:%d" % L_ML)
    i("v_mov_b32 v50, 0")
    i("s_cmp_lg_u32 s3, 4")
    i("s_cbranch_scc1 L_nocnt")
    i("buffer_load_dword v51, v50, s[56:59], 0 offen sc1")
    e.vm.pop()
    e.raw("L_nocnt:")
    i("s_waitcnt lgkmcnt(0)")
    i("v_mov_b32 v48, v46")
    i("v_max_f32_dpp v48, v48, v48 quad_perm:[1,0,3,2] row_mask:0xf bank_mask:0xf")
    i("v_max_f32_dpp v48, v48, v48 quad_perm:[2,3,0,1] row_mask:0xf bank_mask:0xf")
    i("v_max_f32_dpp v48, v48, v48 row_half_mirror row_mask:0xf bank_mask:0xf")
    i("v_sub_f32 v46, v46, v48")
    i("v_sub_f32 v44, v44, v48")
    i("v_mul_f32 v46, s97, v46")
    i("v_mul_f32 v44, s97, v44")
    i("v_exp_f32 v46, v46")
    i("v_exp_f32 v44, v44")
    i("v_mul_f32 v49, v46, v47")
    i("v_add_f32_dpp v49, v49, v49 quad_perm:[1,0,3,2] row_mask:0xf bank_mask:0xf")
    i("v_add_f32_dpp v49, v49, v49 quad_perm:[2,3,0,1] row_mask:0xf bank_mask:0xf")
    i("v_add_f32_dpp v49, v49, v49 row_half_mirror row_mask:0xf bank_mask:0xf")
    i("s_cmp_lg_u32 s3, 0")
    i("s_cbranch_scc1 L_noml")
    i("v_min_u32 v48, -2, v48")
    i("v_min_u32 v49, -2, v49")
    i("s_mov_b64 exec, 1")
    i("buffer_store_dwordx2 v[48:49], v50, s[48:51], s80 offen sc1")
    e.vm.pop()
    i("s_mov_b64 exec, -1")
    e.raw("L_noml:")

    bank = [0, 2, 1, 3]
    for k in range(32):
        a = AB[k & 1]
        for r in range(4):
            i("v_and_b32_dpp v%d, v%d, v%d row_newbcast:%d row_mask:0xf bank_mask:0xf" % (
                a + r, S + (k >> 2), MASK + r, 4 * bank[k & 3]))
        e.wait_vm(("v", k))
        i("v_mfma_f32_16x16x32_bf16 %s, %s, %s, %s" % (vr(ACC), vr(a), vr(reg[("v", k)]), "0" if k == 0 else vr(ACC)))
        issue()
    i("s_lshr_b32 s101, s3, 2")
    i("s_lshl_b32 s101, s101, 7")
    i("v_lshlrev_b32 v45, 5, v3")
    i("v_add_u32 v45, s101, v45")
    for r in range(4):
        i("v_mul_f32 v%d, v44, v%d" % (ACC + r, ACC + r))
    reduce8(L_OP, L_OB)
    i("ds_read_b128 %s, v45 offset:%d" % (vr(XD), L_OB))
    i("ds_read_b128 %s, v45 offset:%d" % (vr(XD + 4), L_OB + 16))
    i("v_lshlrev_b32 v44, 5, v2")
    i("v_lshl_add_u32 v44, v3, 4, v44")
    i("s_and_b32 s101, s3, 3")
    i("s_lshl_b32 s101, s101, 9")
    i("v_add_u32 v44, s101, v44")
    if args.ytr:
        i("v_lshlrev_b32 v45, 11, v2")
        i("v_lshl_add_u32 v45, v3, 4, v45")
        i("s_lshl_b32 s101, s101, 6")
        i("v_add_u32 v45, s101, v45")
    else:
        i("v_mov_b32 v45, v44")
    i("s_waitcnt lgkmcnt(0)")
    for k in range(16):
        a = sel_a(k, XD)
        e.wait_vm(("wo", k))
        i("v_mfma_f32_16x16x32_bf16 %s, %s, %s, %s" % (vr(ACC), vr(a), vr(reg[("wo", k)]), "0" if k == 0 else vr(ACC)))
        issue()
    i("s_mov_b32 exec_hi, 0")
    i("s_cmp_lt_u32 s3, 4")
    i("s_cbranch_scc1 L_ylow")
    i("ds_write_b128 v44, %s offset:%d" % (vr(ACC), L_YP))
    i("s_waitcnt lgkmcnt(0)")
    i("s_barrier")
    i("s_cmp_lg_u32 s3, 4")
    i("s_cbranch_scc1 L_end")
    i("s_branch L_consumer")
    e.raw("L_ylow:")
    i("s_barrier")
    i("ds_read_b128 v[48:51], v44 offset:%d" % L_YP)
    i("s_waitcnt lgkmcnt(0)")
    e.fence(4)
    for r in range(4):
        i("v_add_f32 v%d, v%d, v%d" % (ACC + r, ACC + r, 48 + r))
    for r in range(4):
        i("v_min_u32 v%d, -2, v%d" % (ACC + r, ACC + r))
    i("buffer_store_dwordx4 %s, v45, s[48:51], s79 offen sc1" % vr(ACC))
    i("s_endpgm")

    e.label("L_consumer")
    e.vm = []
    i("s_mov_b64 exec, -1")
    i("s_mov_b32 s82, 0")
    if args.st1 == "own":
        stamp(1)
    e.label("L_cnt")
    i("s_waitcnt vmcnt(0)")
    i("v_readfirstlane_b32 s83, v51")
    i("s_add_u32 s82, s82, 1")
    i("s_cmp_ge_u32 s83, 256")
    i("s_cbranch_scc1 L_cnt_ok")
    i("s_cmp_ge_u32 s82, %d" % SPIN_MAX)
    i("s_cbranch_scc1 L_cnt_ok")
    i("s_sleep 2")
    i("buffer_load_dword v51, v50, s[56:59], 0 offen sc1")
    i("s_branch L_cnt")
    e.label("L_cnt_ok")
    i("s_lshl_b32 s5, s77, 17")
    i("s_lshl_b32 s6, s78, %d" % (11 if args.ytr else 5))
    i("s_add_u32 s5, s5, s6")
    i("s_lshl_b32 s6, s77, 9")
    i("s_add_u32 s6, s6, %d" % WS_ML)
    i("v_lshlrev_b32 v16, %d, v1" % (5 if args.ytr else 11))
    i("v_lshlrev_b32 v17, 3, v1")
    i("buffer_load_dwordx2 v[4:5], v17, s[48:51], s6 offen sc1")
    i("buffer_load_dwordx4 v[8:11], v16, s[48:51], s5 offen sc1")
    i("buffer_load_dwordx4 v[12:15], v16, s[48:51], s5 offen offset:16 sc1")
    i("s_lshl_b32 s17, s63, 11")
    i("s_lshl_b32 s18, s61, 10")
    i("s_add_u32 s17, s17, s18")
    i("s_lshl_b32 s18, s78, 4")
    i("s_add_u32 s17, s17, s18")
    i("v_bfe_u32 v3, v1, 4, 1")
    i("v_lshlrev_b32 v3, 1, v3")
    i("v_bfe_u32 v18, v1, 5, 1")
    i("v_add_u32 v3, v3, v18")
    i("v_bfe_u32 v18, v1, 3, 1")
    i("v_lshl_add_u32 v3, v18, 2, v3")
    i("v_lshlrev_b32 v3, 1, v3")
    i("s_waitcnt vmcnt(2)")
    e.label("L_ml")
    i("v_max_u32 v18, v4, v5")
    i("v_cmp_eq_u32 vcc, -1, v18")
    i("s_add_u32 s82, s82, 1")
    i("s_nop 1")
    i("s_cbranch_vccz L_ml_ok")
    i("s_cmp_ge_u32 s82, %d" % SPIN_MAX)
    i("s_cbranch_scc1 L_ml_ok")
    i("buffer_load_dwordx2 v[4:5], v17, s[48:51], s6 offen sc1")
    i("s_waitcnt vmcnt(0)")
    i("s_branch L_ml")
    e.label("L_ml_ok")
    i("v_max_f32_dpp v6, v4, v4 quad_perm:[1,0,3,2] row_mask:0xf bank_mask:0xf")
    i("v_sub_f32 v4, v4, v6")
    i("v_mul_f32 v4, s97, v4")
    i("v_exp_f32 v4, v4")
    i("v_mul_f32 v5, v5, v4")
    i("v_add_f32_dpp v5, v5, v5 quad_perm:[1,0,3,2] row_mask:0xf bank_mask:0xf")
    i("v_rcp_f32 v5, v5")
    i("v_mul_f32 v4, v4, v5")
    e.label("L_y")
    i("s_waitcnt vmcnt(0)")
    i("v_max3_u32 v18, v8, v9, v10")
    i("v_max3_u32 v19, v11, v12, v13")
    i("v_max3_u32 v18, v18, v14, v15")
    i("v_max_u32 v18, v18, v19")
    i("v_cmp_eq_u32 vcc, -1, v18")
    i("s_add_u32 s82, s82, 1")
    i("s_nop 1")
    i("s_cbranch_vccz L_y_ok")
    i("s_cmp_ge_u32 s82, %d" % SPIN_MAX)
    i("s_cbranch_scc1 L_y_ok")
    i("s_mov_b64 exec, vcc")
    if args.sleep:
        i("s_sleep %d" % args.sleep)
    i("buffer_load_dwordx4 v[8:11], v16, s[48:51], s5 offen sc1")
    i("buffer_load_dwordx4 v[12:15], v16, s[48:51], s5 offen offset:16 sc1")
    i("s_branch L_y")
    e.label("L_y_ok")
    i("s_mov_b64 exec, -1")
    for r in range(8):
        i("v_mul_f32 v%d, v4, v%d" % (8 + r, 8 + r))
    for r in range(0, 8, 2):
        i("v_permlane32_swap_b32 v%d, v%d" % (8 + r, 9 + r))
    for r in range(0, 8, 2):
        i("v_add_f32 v%d, v%d, v%d" % (8 + r, 8 + r, 9 + r))
    i("v_permlane16_swap_b32 v8, v10")
    i("v_permlane16_swap_b32 v12, v14")
    i("v_add_f32 v8, v8, v10")
    i("v_add_f32 v12, v12, v14")
    i("v_add_f32_dpp v8, v8, v8 row_ror:8 row_mask:0xf bank_mask:0x3")
    i("v_add_f32_dpp v8, v12, v12 row_ror:8 row_mask:0xf bank_mask:0xc")
    i("v_add_f32_dpp v8, v8, v8 row_half_mirror row_mask:0xf bank_mask:0xf")
    i("v_add_f32_dpp v8, v8, v8 quad_perm:[1,0,3,2] row_mask:0xf bank_mask:0xf")
    i("v_add_f32_dpp v8, v8, v8 quad_perm:[2,3,0,1] row_mask:0xf bank_mask:0xf")
    i("v_cvt_pk_bf16_f32 v8, v8, v8")
    i("s_mov_b32 exec_lo, 0x01010101")
    i("s_mov_b32 exec_hi, 0x01010101")
    i("buffer_store_short v8, v3, s[52:55], s17 offen")
    if args.stamps:
        stamp(3)
        i("s_waitcnt lgkmcnt(0)")
        i("s_mov_b64 exec, 1")
        for r in range(8):
            i("v_mov_b32 v%d, s%d" % (16 + r, 84 + r))
        i("s_lshl_b32 s73, s2, 5")
        i("s_add_u32 s73, s73, %d" % STAMP_OFF)
        i("buffer_store_dwordx4 v[16:19], v50, s[48:51], s73 offen")
        i("buffer_store_dwordx4 v[20:23], v50, s[48:51], s73 offen offset:16")
    e.raw("L_end:")
    i("s_endpgm")

    out = HEADER
    out += "; @launch grid=(256,1,1) block=(512,1,1) lds=%d\n" % LDS_BYTES
    out += '.amdgcn_target "amdgcn-amd-amdhsa--gfx950"\n.text\n'
    out += e.text()
    out += '.section .rodata,"a"\n'
    for name, nv, ns in ((KN, args.nv if args.nv else (RB + 4 * args.depth + 7) // 8 * 8, 102),):
        out += ".p2align 6\n.amdhsa_kernel %s\n" % name
        out += "  .amdhsa_next_free_vgpr %d\n  .amdhsa_next_free_sgpr %d\n  .amdhsa_accum_offset %d\n" % (nv, ns, nv)
        out += "  .amdhsa_group_segment_fixed_size 0\n  .amdhsa_kernarg_size 104\n"
        out += "  .amdhsa_user_sgpr_count 2\n  .amdhsa_user_sgpr_kernarg_segment_ptr 1\n"
        out += "  .amdhsa_system_sgpr_workgroup_id_x 1\n.end_amdhsa_kernel\n"
    return out


if __name__ == "__main__":
    ap = argparse.ArgumentParser()
    ap.add_argument("-o", default="cdna_kernels/%s.s" % NAME)
    ap.add_argument("--nt", type=int, default=1)
    ap.add_argument("--wnt", type=int, default=0)
    ap.add_argument("--rot", type=int, default=1)
    ap.add_argument("--wbar", type=int, default=0)
    ap.add_argument("--st1", default="q")
    ap.add_argument("--depth", type=int, default=16)
    ap.add_argument("--nv", type=int, default=256)
    ap.add_argument("--ytr", type=int, default=1)
    ap.add_argument("--sleep", type=int, default=0)
    ap.add_argument("--stamps", type=int, default=0)
    args = ap.parse_args()
    open(args.o, "w").write(gen(args))
```

```python
import sys, os, argparse
sys.path.insert(0, os.path.dirname(__file__))
from emit import Emitter

NAME = "concat_heads__sliding_block_cached__sliding_block_cached__decode"
HEADER = open("cdna_kernels/%s.s.ref" % NAME).read().split("; Override launch geometry")[0]

LOG2E = 0x3FB8AA3B
SCALE = 0x3DB504F3

PSTR = 528
L_QP = 0
L_QB = 4352
L_ML = 4608
L_OP = 4864
L_OB = 9216
L_YP = 9472
LDS_BYTES = 11520

WS_ML = 512 * 1024
STAMP_OFF = 8 << 20
SPIN_MAX = 1 << 16


def vr(b, n=4):
    return "v[%d:%d]" % (b, b + n - 1)


def gen(args):
    e = Emitter()
    i = e.i
    kvflag = " nt" if args.nt else ""
    wflag = " nt" if args.wnt else ""
    MASK, SEL, XD, QD = 8, 12, 20, 28
    AB = [32, 36]
    ACC = 40
    T = [44, 48]
    S = 52
    RB = 64
    KN = NAME + "_kernel"

    def stamp(k):
        if args.stamps:
            i("s_memrealtime s[%d:%d]" % (84 + 2 * k, 85 + 2 * k))

    e.raw(".globl %s\n.p2align 8\n.type %s,@function\n%s:" % (KN, KN, KN))
    i("s_cmp_ge_u32 s2, 256")
    i("s_cbranch_scc1 L_end")
    stamp(0)
    if args.map == 0:
        i("s_and_b32 s60, s2, 7")
        i("s_lshl_b32 s60, s60, 3")
        i("s_lshr_b32 s61, s2, 5")
        i("s_add_u32 s60, s60, s61")
    else:
        i("s_lshr_b32 s60, s2, 2")
    i("s_lshr_b32 s61, s60, 5")
    i("s_mul_i32 s62, s61, 40")
    i("s_add_u32 s4, s0, s62")
    i("s_addc_u32 s5, s1, 0")
    i("s_load_dwordx8 s[8:15], s[4:5], 0")
    i("s_load_dwordx2 s[16:17], s[4:5], 32")
    i("s_load_dwordx4 s[20:23], s[0:1], 80")
    i("s_load_dwordx2 s[24:25], s[0:1], 96")
    i("s_and_b32 s62, s60, 31")
    if args.map == 0:
        i("s_bfe_u32 s63, s2, 0x10004")
        i("s_bfe_u32 s64, s2, 0x10003")
    else:
        i("s_bfe_u32 s63, s2, 0x10001")
        i("s_and_b32 s64, s2, 1")
    i("v_and_b32 v1, 63, v0")
    i("v_lshrrev_b32 v7, 6, v0")
    i("v_and_b32 v2, 15, v0")
    i("v_readfirstlane_b32 s3, v7")
    i("v_bfe_u32 v3, v0, 4, 2")
    i("s_lshr_b32 s65, s2, 3")
    i("s_mul_i32 s65, s65, %d" % args.rot)
    for a in range(8):
        i("s_add_u32 s%d, s65, %d" % (66 + a, a))
        i("s_and_b32 s%d, s%d, 7" % (66 + a, 66 + a))
        i("s_lshl_b32 s%d, s%d, 15" % (66 + a, 66 + a))
    i("s_movk_i32 s74, 0x1000")
    i("s_movk_i32 s75, 0x2000")
    i("s_movk_i32 s76, 0x3000")
    i("v_lshlrev_b32 v4, 4, v1")
    i("v_lshl_add_u32 v4, v7, 12, v4")
    i("v_lshlrev_b32 v5, 4, v2")
    i("v_lshl_add_u32 v5, v3, 17, v5")
    i("v_lshl_add_u32 v5, v7, 19, v5")
    i("v_lshlrev_b32 v6, 4, v2")
    i("v_lshl_add_u32 v6, v3, 14, v6")
    i("v_and_b32 v60, 3, v7")
    i("v_lshl_add_u32 v6, v60, 8, v6")
    i("v_lshrrev_b32 v60, 2, v7")
    i("v_lshl_add_u32 v6, v60, 16, v6")
    i("v_lshlrev_b32 v61, 5, v3")
    i("v_lshl_add_u32 v61, v7, 7, v61")
    i("s_lshl_b32 s18, s63, 5")
    i("s_add_u32 s18, s18, s62")
    i("s_lshl_b32 s18, s18, 21")
    i("s_lshl_b32 s19, s64, 18")
    i("s_add_u32 s18, s18, s19")
    i("s_add_u32 s18, s18, 0x180000")
    i("s_lshl_b32 s19, s62, 8")
    i("s_lshl_b32 s26, s62, 17")
    i("s_lshl_b32 s27, s63, 10")
    i("s_mov_b32 s30, 0x40000")
    i("s_mov_b32 s31, 0x20000")
    i("s_mov_b32 s34, 0x40000")
    i("s_mov_b32 s35, 0x20000")
    i("s_sub_u32 s38, 0x400000, s19")
    i("s_mov_b32 s39, 0x20000")
    i("s_mov_b32 s42, 0x20000")
    i("s_mov_b32 s43, 0x20000")
    i("s_movk_i32 s46, 0x400")
    i("s_mov_b32 s47, 0x20000")
    i("s_mov_b32 s50, 0x1000000")
    i("s_mov_b32 s51, 0x20000")
    i("s_movk_i32 s54, 0x1000")
    i("s_mov_b32 s55, 0x20000")
    i("s_movk_i32 s58, 0x100")
    i("s_mov_b32 s59, 0x20000")
    i("s_lshl_b32 s77, s61, 1")
    i("s_add_u32 s77, s77, s63")
    i("s_lshl_b32 s78, s62, 1")
    i("s_add_u32 s78, s78, s64")
    i("s_lshl_b32 s79, s77, 17")
    i("s_lshl_b32 s80, s78, %d" % (5 if args.ytr else 11))
    i("s_add_u32 s79, s79, s80")
    i("s_lshl_b32 s80, s77, 6")
    i("s_add_u32 s80, s80, s78")
    i("s_lshl_b32 s80, s80, 3")
    i("s_add_u32 s80, s80, %d" % WS_ML)
    i("s_mov_b32 s81, 0")
    i("s_waitcnt lgkmcnt(0)")
    i("s_add_u32 s44, s8, s27")
    i("s_addc_u32 s45, s9, 0")
    i("s_add_u32 s36, s14, s19")
    i("s_addc_u32 s37, s15, 0")
    i("s_add_u32 s28, s10, s18")
    i("s_addc_u32 s29, s11, 0")
    i("s_mov_b32 s48, s24")
    i("s_mov_b32 s49, s25")
    i("s_mov_b32 s56, s22")
    i("s_mov_b32 s57, s23")
    i("s_cmp_lg_u32 s3, 7")
    i("s_cbranch_scc1 L_nopoison")
    for r in range(4):
        i("v_mov_b32 v%d, -1" % (44 + r))
    if args.ytr:
        i("v_lshlrev_b32 v48, 11, v1")
    else:
        i("v_lshlrev_b32 v48, 5, v1")
    i("v_mov_b32 v49, 0")
    i("buffer_store_dwordx4 v[44:47], v48, s[48:51], s79 offen sc1")
    i("buffer_store_dwordx4 v[44:47], v48, s[48:51], s79 offen offset:16 sc1")
    i("buffer_store_dwordx2 v[44:45], v49, s[48:51], s80 offen sc1")
    e.vm = []
    e.raw("L_nopoison:")
    D = args.depth
    seq = [("wq", k) for k in range(16)] + [("k", k) for k in range(32)] + [("v", k) for k in range(32)] + \
          [("wo", k) for k in range(16)]
    reg = {t: RB + 4 * (n % D) for n, t in enumerate(seq)}
    state = {"next": 0}

    def issue():
        n = state["next"]
        if n >= len(seq):
            return
        state["next"] = n + 1
        t = seq[n]
        kind, k = t
        dst = vr(reg[t])
        if kind == "wq":
            i("buffer_load_dwordx4 %s, v5, s[36:39], s81 offen%s" % (dst, wflag), tag=t)
            if k < 15:
                i("s_add_u32 s81, s81, 0x2000")
        elif kind in "kv":
            i("buffer_load_dwordx4 %s, v4, %s, s%d offen offset:%d%s" % (
                dst, "s[28:31]" if kind == "k" else "s[32:35]", 66 + (k >> 2), (k & 3) * 1024, kvflag), tag=t)
        else:
            so = ["0", "s74", "s75", "s76"][k >> 2]
            i("buffer_load_dwordx4 %s, v6, s[40:43], %s offen offset:%d%s" % (dst, so, (k & 3) * 1024, wflag), tag=t)

    i("buffer_load_dwordx4 %s, v61, s[44:47], 0 offen" % vr(XD), tag="x0")
    i("buffer_load_dwordx4 %s, v61, s[44:47], 0 offen offset:16" % vr(XD + 4), tag="x1")
    for n in range(D):
        issue()
        if n == 15 and args.wbar:
            i("s_barrier")
    i("s_add_u32 s32, s12, s18")
    i("s_addc_u32 s33, s13, 0")
    i("s_add_u32 s40, s16, s26")
    i("s_addc_u32 s41, s17, 0")
    i("s_mov_b32 s52, s20")
    i("s_mov_b32 s53, s21")
    i("v_and_b32 v60, 1, v2")
    i("v_lshlrev_b32 v60, 4, v60")
    i("v_mov_b32 v62, 0xffff")
    i("v_lshlrev_b32 v62, v60, v62")
    i("v_lshrrev_b32 v60, 1, v2")
    for r in range(4):
        i("v_cmp_eq_u32 vcc, %d, v60" % r)
        i("v_cndmask_b32 v%d, 0, v62, vcc" % (MASK + r))
    i("s_mov_b32 s100, 0x0c0c0c0c")
    i("v_mov_b32 v60, 0x01000100")
    i("v_mov_b32 v62, 0x03020302")
    for r in range(4):
        i("v_bfi_b32 v%d, v%d, v60, s100" % (SEL + r, MASK + r))
        i("v_bfi_b32 v%d, v%d, v62, s100" % (SEL + 4 + r, MASK + r))

    vreg = {}

    def sel_a(k, src_dw):
        a = AB[k & 1]
        for r in range(4):
            i("v_perm_b32 v%d, v%d, v%d, v%d" % (a + r, src_dw + (k >> 1), src_dw + (k >> 1), SEL + 4 * (k & 1) + r))
        return a

    e.wait_vm("x1")
    i("s_cmp_lg_u32 s3, 7")
    i("s_cbranch_scc1 L_nosignal")
    i("v_mov_b32 v48, 1")
    i("v_mov_b32 v49, 0")
    i("s_mov_b64 exec, 1")
    i("buffer_atomic_add v48, v49, s[56:59], 0 offen sc1")
    e.vm.pop()
    i("s_mov_b64 exec, -1")
    e.raw("L_nosignal:")
    for k in range(16):
        a = sel_a(k, XD)
        e.wait_vm(("wq", k))
        i("v_mfma_f32_16x16x32_bf16 %s, %s, %s, %s" % (vr(ACC), vr(a), vr(reg[("wq", k)]), "0" if k == 0 else vr(ACC)))
        issue()

    i("v_lshlrev_b32 v60, 5, v2")
    i("v_lshl_add_u32 v60, v3, 4, v60")
    i("s_mul_i32 s101, s3, %d" % PSTR)
    i("v_add_u32 v60, s101, v60")
    i("v_and_b32 v61, 3, v0")
    i("v_mul_u32_u24 v61, %d, v61" % (2 * PSTR))
    i("v_lshrrev_b32 v62, 2, v0")
    i("v_lshl_add_u32 v61, v62, 2, v61")
    i("v_lshlrev_b32 v62, 1, v62")

    def reduce8(pbase, qbase, mid=None):
        i("v_add_u32 v63, %d, v61" % pbase)
        i("s_mov_b32 exec_hi, 0")
        i("ds_write_b128 v60, %s offset:%d" % (vr(ACC), pbase))
        i("s_mov_b32 exec_hi, -1")
        if mid:
            mid()
        i("s_waitcnt lgkmcnt(0)")
        i("s_barrier")
        i("ds_read2_b32 v[46:47], v63 offset0:0 offset1:%d" % (PSTR // 4))
        i("s_waitcnt lgkmcnt(0)")
        i("v_add_f32 v46, v46, v47")
        i("v_add_f32_dpp v46, v46, v46 quad_perm:[1,0,3,2] row_mask:0xf bank_mask:0xf")
        i("v_add_f32_dpp v46, v46, v46 quad_perm:[2,3,0,1] row_mask:0xf bank_mask:0xf")
        i("v_cvt_pk_bf16_f32 v46, v46, v46")
        i("ds_write_b16 v62, v46 offset:%d" % qbase)
        i("s_waitcnt lgkmcnt(0)")
        i("s_barrier")

    reduce8(L_QP, L_QB)
    i("v_lshlrev_b32 v44, 4, v2")
    i("ds_read_b128 %s, v44 offset:%d" % (vr(QD), L_QB))
    i("s_waitcnt lgkmcnt(0)")
    if args.st1 == "q":
        stamp(1)

    def merge(a):
        t = T[a & 1]
        i("v_add_f32_dpp v%d, v%d, v%d row_ror:8 row_mask:0xf bank_mask:0x3" % (t, t, t))
        i("v_add_f32_dpp v%d, v%d, v%d row_ror:8 row_mask:0xf bank_mask:0x3" % (t + 2, t + 2, t + 2))
        i("v_add_f32_dpp v%d, v%d, v%d row_ror:8 row_mask:0xf bank_mask:0xc" % (t, t + 1, t + 1))
        i("v_add_f32_dpp v%d, v%d, v%d row_ror:8 row_mask:0xf bank_mask:0xc" % (t + 2, t + 3, t + 3))
        s = S + a
        i("v_add_f32_dpp v%d, v%d, v%d row_half_mirror row_mask:0xf bank_mask:0x5" % (s, t, t))
        i("v_add_f32_dpp v%d, v%d, v%d row_half_mirror row_mask:0xf bank_mask:0xa" % (s, t + 2, t + 2))
        i("v_add_f32_dpp v%d, v%d, v%d quad_perm:[1,0,3,2] row_mask:0xf bank_mask:0xf" % (s, s, s))
        i("v_add_f32_dpp v%d, v%d, v%d quad_perm:[2,3,0,1] row_mask:0xf bank_mask:0xf" % (s, s, s))

    for a in range(8):
        t = T[a & 1]
        e.wait_vm(("k", 4 * a + 3))
        for d in range(4):
            for q in range(4):
                kr = reg[("k", 4 * a + q)] + d
                i("v_dot2_f32_bf16 v%d, v%d, v%d, %s" % (t + q, kr, QD + d, "0" if d == 0 else "v%d" % (t + q)))
        for q in range(4):
            issue()
        merge(a)

    i("s_mov_b32 s100, 0xffff0000")
    i("s_mov_b32 s101, 0x%x" % SCALE)
    i("s_mov_b32 s97, 0x%x" % LOG2E)
    for a in range(8):
        i("v_cvt_pk_bf16_f32 v%d, v%d, v%d" % (S + a, S + a, S + a))
    for a in range(8):
        i("v_and_b32 v%d, s100, v%d" % (S + a, S + a))
    for a in range(8):
        i("v_mul_f32 v%d, s101, v%d" % (S + a, S + a))
    for a in range(8):
        i("v_cvt_pk_bf16_f32 v%d, v%d, v%d" % (S + a, S + a, S + a))
    for a in range(8):
        i("v_and_b32 v%d, s100, v%d" % (S + a, S + a))
    i("v_max3_f32 v44, v%d, v%d, v%d" % (S, S + 1, S + 2))
    i("v_max3_f32 v45, v%d, v%d, v%d" % (S + 3, S + 4, S + 5))
    i("v_max3_f32 v44, v44, v%d, v%d" % (S + 6, S + 7))
    i("v_max_f32 v44, v44, v45")

    def allred(op, r, t):
        i("%s_dpp v%d, v%d, v%d row_ror:4 row_mask:0xf bank_mask:0xf" % (op, r, r, r))
        i("%s_dpp v%d, v%d, v%d row_ror:8 row_mask:0xf bank_mask:0xf" % (op, r, r, r))
        i("v_mov_b32 v%d, v%d" % (t, r))
        i("v_permlane16_swap_b32 v%d, v%d" % (r, t))
        i("%s v%d, v%d, v%d" % (op, r, r, t))
        i("v_mov_b32 v%d, v%d" % (t, r))
        i("v_permlane32_swap_b32 v%d, v%d" % (r, t))
        i("%s v%d, v%d, v%d" % (op, r, r, t))

    allred("v_max_f32", 44, 45)
    for a in range(8):
        i("v_sub_f32 v%d, v%d, v44" % (S + a, S + a))
    for a in range(8):
        i("v_mul_f32 v%d, s97, v%d" % (S + a, S + a))
    for a in range(8):
        i("v_exp_f32 v%d, v%d" % (S + a, S + a))
    i("v_add_f32 v45, v%d, v%d" % (S, S + 1))
    i("v_add_f32 v46, v%d, v%d" % (S + 2, S + 3))
    i("v_add_f32 v47, v%d, v%d" % (S + 4, S + 5))
    i("v_add_f32 v48, v%d, v%d" % (S + 6, S + 7))
    i("v_add_f32 v45, v45, v46")
    i("v_add_f32 v47, v47, v48")
    i("v_add_f32 v45, v45, v47")
    allred("v_add_f32", 45, 46)
    i("s_lshl_b32 s101, s3, 3")
    i("v_mov_b32 v46, s101")
    i("ds_write_b64 v46, v[44:45] offset:%d" % L_ML)
    for a in range(8):
        i("v_cvt_pk_bf16_f32 v%d, v%d, v%d" % (S + a, S + a, S + a))
    i("v_and_b32 v46, 7, v0")
    i("v_lshlrev_b32 v46, 3, v46")
    i("s_waitcnt lgkmcnt(0)")
    i("s_barrier")
    stamp(2)
    i("ds_read_b64 v[46:47], v46 offset:%d" % L_ML)
    i("v_mov_b32 v50, 0")
    i("s_cmp_lg_u32 s3, 4")
    i("s_cbranch_scc1 L_nocnt")
    i("buffer_load_dword v51, v50, s[56:59], 0 offen sc1")
    e.vm.pop()
    e.raw("L_nocnt:")
    i("s_waitcnt lgkmcnt(0)")
    i("v_mov_b32 v48, v46")
    i("v_max_f32_dpp v48, v48, v48 quad_perm:[1,0,3,2] row_mask:0xf bank_mask:0xf")
    i("v_max_f32_dpp v48, v48, v48 quad_perm:[2,3,0,1] row_mask:0xf bank_mask:0xf")
    i("v_max_f32_dpp v48, v48, v48 row_half_mirror row_mask:0xf bank_mask:0xf")
    i("v_sub_f32 v46, v46, v48")
    i("v_sub_f32 v44, v44, v48")
    i("v_mul_f32 v46, s97, v46")
    i("v_mul_f32 v44, s97, v44")
    i("v_exp_f32 v46, v46")
    i("v_exp_f32 v44, v44")
    i("v_mul_f32 v49, v46, v47")
    i("v_add_f32_dpp v49, v49, v49 quad_perm:[1,0,3,2] row_mask:0xf bank_mask:0xf")
    i("v_add_f32_dpp v49, v49, v49 quad_perm:[2,3,0,1] row_mask:0xf bank_mask:0xf")
    i("v_add_f32_dpp v49, v49, v49 row_half_mirror row_mask:0xf bank_mask:0xf")
    i("s_cmp_lg_u32 s3, 0")
    i("s_cbranch_scc1 L_noml")
    i("v_min_u32 v48, -2, v48")
    i("v_min_u32 v49, -2, v49")
    i("s_mov_b64 exec, 1")
    i("buffer_store_dwordx2 v[48:49], v50, s[48:51], s80 offen sc1")
    e.vm.pop()
    i("s_mov_b64 exec, -1")
    e.raw("L_noml:")

    bank = [0, 2, 1, 3]
    for k in range(32):
        a = AB[k & 1]
        for r in range(4):
            i("v_and_b32_dpp v%d, v%d, v%d row_newbcast:%d row_mask:0xf bank_mask:0xf" % (
                a + r, S + (k >> 2), MASK + r, 4 * bank[k & 3]))
        e.wait_vm(("v", k))
        i("v_mfma_f32_16x16x32_bf16 %s, %s, %s, %s" % (vr(ACC), vr(a), vr(reg[("v", k)]), "0" if k == 0 else vr(ACC)))
        issue()
    i("s_lshr_b32 s101, s3, 2")
    i("s_lshl_b32 s101, s101, 7")
    i("v_lshlrev_b32 v45, 5, v3")
    i("v_add_u32 v45, s101, v45")
    for r in range(4):
        i("v_mul_f32 v%d, v44, v%d" % (ACC + r, ACC + r))
    reduce8(L_OP, L_OB)
    i("ds_read_b128 %s, v45 offset:%d" % (vr(XD), L_OB))
    i("ds_read_b128 %s, v45 offset:%d" % (vr(XD + 4), L_OB + 16))
    i("v_lshlrev_b32 v44, 5, v2")
    i("v_lshl_add_u32 v44, v3, 4, v44")
    i("s_and_b32 s101, s3, 3")
    i("s_lshl_b32 s101, s101, 9")
    i("v_add_u32 v44, s101, v44")
    if args.ytr:
        i("v_lshlrev_b32 v45, 11, v2")
        i("v_lshl_add_u32 v45, v3, 4, v45")
        i("s_lshl_b32 s101, s101, 6")
        i("v_add_u32 v45, s101, v45")
    else:
        i("v_mov_b32 v45, v44")
    i("s_waitcnt lgkmcnt(0)")
    for k in range(16):
        a = sel_a(k, XD)
        e.wait_vm(("wo", k))
        i("v_mfma_f32_16x16x32_bf16 %s, %s, %s, %s" % (vr(ACC), vr(a), vr(reg[("wo", k)]), "0" if k == 0 else vr(ACC)))
        issue()
    i("s_mov_b32 exec_hi, 0")
    i("s_cmp_lt_u32 s3, 4")
    i("s_cbranch_scc1 L_ylow")
    i("ds_write_b128 v44, %s offset:%d" % (vr(ACC), L_YP))
    i("s_waitcnt lgkmcnt(0)")
    i("s_barrier")
    i("s_cmp_lg_u32 s3, 4")
    i("s_cbranch_scc1 L_end")
    i("s_branch L_consumer")
    e.raw("L_ylow:")
    i("s_barrier")
    i("ds_read_b128 v[48:51], v44 offset:%d" % L_YP)
    i("s_waitcnt lgkmcnt(0)")
    e.fence(4)
    for r in range(4):
        i("v_add_f32 v%d, v%d, v%d" % (ACC + r, ACC + r, 48 + r))
    for r in range(4):
        i("v_min_u32 v%d, -2, v%d" % (ACC + r, ACC + r))
    i("buffer_store_dwordx4 %s, v45, s[48:51], s79 offen sc1" % vr(ACC))
    i("s_endpgm")

    e.label("L_consumer")
    e.vm = []
    i("s_mov_b64 exec, -1")
    i("s_mov_b32 s82, 0")
    if args.st1 == "own":
        stamp(1)
    e.label("L_cnt")
    i("s_waitcnt vmcnt(0)")
    i("v_readfirstlane_b32 s83, v51")
    i("s_add_u32 s82, s82, 1")
    i("s_cmp_ge_u32 s83, 256")
    i("s_cbranch_scc1 L_cnt_ok")
    i("s_cmp_ge_u32 s82, %d" % SPIN_MAX)
    i("s_cbranch_scc1 L_cnt_ok")
    i("s_sleep 2")
    i("buffer_load_dword v51, v50, s[56:59], 0 offen sc1")
    i("s_branch L_cnt")
    e.label("L_cnt_ok")
    i("s_lshl_b32 s5, s77, 17")
    i("s_lshl_b32 s6, s78, %d" % (11 if args.ytr else 5))
    i("s_add_u32 s5, s5, s6")
    i("s_lshl_b32 s6, s77, 9")
    i("s_add_u32 s6, s6, %d" % WS_ML)
    i("v_lshlrev_b32 v16, %d, v1" % (5 if args.ytr else 11))
    i("v_lshlrev_b32 v17, 3, v1")
    i("buffer_load_dwordx2 v[4:5], v17, s[48:51], s6 offen sc1")
    i("buffer_load_dwordx4 v[8:11], v16, s[48:51], s5 offen sc1")
    i("buffer_load_dwordx4 v[12:15], v16, s[48:51], s5 offen offset:16 sc1")
    i("s_lshl_b32 s17, s63, 11")
    i("s_lshl_b32 s18, s61, 10")
    i("s_add_u32 s17, s17, s18")
    i("s_lshl_b32 s18, s78, 4")
    i("s_add_u32 s17, s17, s18")
    i("v_bfe_u32 v3, v1, 4, 1")
    i("v_lshlrev_b32 v3, 1, v3")
    i("v_bfe_u32 v18, v1, 5, 1")
    i("v_add_u32 v3, v3, v18")
    i("v_bfe_u32 v18, v1, 3, 1")
    i("v_lshl_add_u32 v3, v18, 2, v3")
    i("v_lshlrev_b32 v3, 1, v3")
    i("s_waitcnt vmcnt(2)")
    e.label("L_ml")
    i("v_max_u32 v18, v4, v5")
    i("v_cmp_eq_u32 vcc, -1, v18")
    i("s_add_u32 s82, s82, 1")
    i("s_nop 1")
    i("s_cbranch_vccz L_ml_ok")
    i("s_cmp_ge_u32 s82, %d" % SPIN_MAX)
    i("s_cbranch_scc1 L_ml_ok")
    i("buffer_load_dwordx2 v[4:5], v17, s[48:51], s6 offen sc1")
    i("s_waitcnt vmcnt(0)")
    i("s_branch L_ml")
    e.label("L_ml_ok")
    i("v_max_f32_dpp v6, v4, v4 quad_perm:[1,0,3,2] row_mask:0xf bank_mask:0xf")
    i("v_sub_f32 v4, v4, v6")
    i("v_mul_f32 v4, s97, v4")
    i("v_exp_f32 v4, v4")
    i("v_mul_f32 v5, v5, v4")
    i("v_add_f32_dpp v5, v5, v5 quad_perm:[1,0,3,2] row_mask:0xf bank_mask:0xf")
    i("v_rcp_f32 v5, v5")
    i("v_mul_f32 v4, v4, v5")
    e.label("L_y")
    i("s_waitcnt vmcnt(0)")
    i("v_max3_u32 v18, v8, v9, v10")
    i("v_max3_u32 v19, v11, v12, v13")
    i("v_max3_u32 v18, v18, v14, v15")
    i("v_max_u32 v18, v18, v19")
    i("v_cmp_eq_u32 vcc, -1, v18")
    i("s_add_u32 s82, s82, 1")
    i("s_nop 1")
    i("s_cbranch_vccz L_y_ok")
    i("s_cmp_ge_u32 s82, %d" % SPIN_MAX)
    i("s_cbranch_scc1 L_y_ok")
    i("s_mov_b64 exec, vcc")
    if args.sleep:
        i("s_sleep %d" % args.sleep)
    i("buffer_load_dwordx4 v[8:11], v16, s[48:51], s5 offen sc1")
    i("buffer_load_dwordx4 v[12:15], v16, s[48:51], s5 offen offset:16 sc1")
    i("s_branch L_y")
    e.label("L_y_ok")
    i("s_mov_b64 exec, -1")
    for r in range(8):
        i("v_mul_f32 v%d, v4, v%d" % (8 + r, 8 + r))
    for r in range(0, 8, 2):
        i("v_permlane32_swap_b32 v%d, v%d" % (8 + r, 9 + r))
    for r in range(0, 8, 2):
        i("v_add_f32 v%d, v%d, v%d" % (8 + r, 8 + r, 9 + r))
    i("v_permlane16_swap_b32 v8, v10")
    i("v_permlane16_swap_b32 v12, v14")
    i("v_add_f32 v8, v8, v10")
    i("v_add_f32 v12, v12, v14")
    i("v_add_f32_dpp v8, v8, v8 row_ror:8 row_mask:0xf bank_mask:0x3")
    i("v_add_f32_dpp v8, v12, v12 row_ror:8 row_mask:0xf bank_mask:0xc")
    i("v_add_f32_dpp v8, v8, v8 row_half_mirror row_mask:0xf bank_mask:0xf")
    i("v_add_f32_dpp v8, v8, v8 quad_perm:[1,0,3,2] row_mask:0xf bank_mask:0xf")
    i("v_add_f32_dpp v8, v8, v8 quad_perm:[2,3,0,1] row_mask:0xf bank_mask:0xf")
    i("v_cvt_pk_bf16_f32 v8, v8, v8")
    i("s_mov_b32 exec_lo, 0x01010101")
    i("s_mov_b32 exec_hi, 0x01010101")
    i("buffer_store_short v8, v3, s[52:55], s17 offen")
    if args.stamps:
        stamp(3)
        i("s_waitcnt lgkmcnt(0)")
        i("s_mov_b64 exec, 1")
        for r in range(8):
            i("v_mov_b32 v%d, s%d" % (16 + r, 84 + r))
        i("s_lshl_b32 s73, s2, 5")
        i("s_add_u32 s73, s73, %d" % STAMP_OFF)
        i("buffer_store_dwordx4 v[16:19], v50, s[48:51], s73 offen")
        i("buffer_store_dwordx4 v[20:23], v50, s[48:51], s73 offen offset:16")
    e.raw("L_end:")
    i("s_endpgm")

    out = HEADER
    out += "; @launch grid=(256,1,1) block=(512,1,1) lds=%d\n" % LDS_BYTES
    out += '.amdgcn_target "amdgcn-amd-amdhsa--gfx950"\n.text\n'
    out += e.text()
    out += '.section .rodata,"a"\n'
    for name, nv, ns in ((KN, args.nv if args.nv else (RB + 4 * args.depth + 7) // 8 * 8, 102),):
        out += ".p2align 6\n.amdhsa_kernel %s\n" % name
        out += "  .amdhsa_next_free_vgpr %d\n  .amdhsa_next_free_sgpr %d\n  .amdhsa_accum_offset %d\n" % (nv, ns, nv)
        out += "  .amdhsa_group_segment_fixed_size 0\n  .amdhsa_kernarg_size 104\n"
        out += "  .amdhsa_user_sgpr_count 2\n  .amdhsa_user_sgpr_kernarg_segment_ptr 1\n"
        out += "  .amdhsa_system_sgpr_workgroup_id_x 1\n.end_amdhsa_kernel\n"
    return out


if __name__ == "__main__":
    ap = argparse.ArgumentParser()
    ap.add_argument("-o", default="cdna_kernels/%s.s" % NAME)
    ap.add_argument("--map", type=int, default=0)
    ap.add_argument("--nt", type=int, default=1)
    ap.add_argument("--wnt", type=int, default=0)
    ap.add_argument("--rot", type=int, default=1)
    ap.add_argument("--wbar", type=int, default=0)
    ap.add_argument("--st1", default="q")
    ap.add_argument("--depth", type=int, default=16)
    ap.add_argument("--nv", type=int, default=256)
    ap.add_argument("--ytr", type=int, default=1)
    ap.add_argument("--sleep", type=int, default=0)
    ap.add_argument("--stamps", type=int, default=0)
    args = ap.parse_args()
    open(args.o, "w").write(gen(args))
```

```python
import sys, os, argparse
sys.path.insert(0, os.path.dirname(__file__))
from emit import Emitter

NAME = "concat_heads__sliding_block_cached__sliding_block_cached__decode"
HEADER = open("cdna_kernels/%s.s.ref" % NAME).read().split("; Override launch geometry")[0]

LOG2E = "0x3fb8aa3b"
SCALE = 0x3DB504F3

PSTR = 528
L_QP = 0
L_QB = 4352
L_ML = 4608
L_OP = 4864
L_OB = 9216
LDS_BYTES = 9472

WS_ML = 512 * 1024
STAMP_OFF = 8 << 20
SPIN_MAX = 1 << 16


def vr(b, n=4):
    return "v[%d:%d]" % (b, b + n - 1)


def gen(args):
    e = Emitter()
    i = e.i
    kvflag = " nt" if args.nt else ""
    wflag = " nt" if args.wnt else ""
    MASK, SEL, XD, QD = 8, 12, 20, 28
    AB = [32, 36]
    ACC = 40
    T = [44, 48]
    S = 52
    RB = 64
    KN = NAME + "_kernel"
    CW = args.cw

    def stamp(k):
        if args.stamps:
            i("s_memrealtime s[%d:%d]" % (84 + 2 * k, 85 + 2 * k))

    e.raw(".globl %s\n.p2align 8\n.type %s,@function\n%s:" % (KN, KN, KN))
    i("s_cmp_ge_u32 s2, 256")
    i("s_cbranch_scc1 L_end")
    stamp(0)
    if args.xid:
        i("s_xor_b32 s2, s2, %d" % args.xid)
    i("s_and_b32 s60, s2, 7")
    i("s_lshl_b32 s60, s60, 3")
    i("s_lshr_b32 s61, s2, 5")
    i("s_add_u32 s60, s60, s61")
    i("s_lshr_b32 s61, s60, 5")
    i("s_mul_i32 s62, s61, 40")
    i("s_add_u32 s4, s0, s62")
    i("s_addc_u32 s5, s1, 0")
    i("s_load_dwordx8 s[8:15], s[4:5], 0")
    i("s_load_dwordx2 s[16:17], s[4:5], 32")
    i("s_load_dwordx4 s[20:23], s[0:1], 80")
    i("s_load_dwordx2 s[24:25], s[0:1], 96")
    i("s_and_b32 s62, s60, 31")
    i("s_bfe_u32 s63, s2, 0x10004")
    i("s_bfe_u32 s64, s2, 0x10003")
    i("v_and_b32 v1, 63, v0")
    i("v_lshrrev_b32 v7, 6, v0")
    i("v_and_b32 v2, 15, v0")
    i("v_readfirstlane_b32 s3, v7")
    i("v_bfe_u32 v3, v0, 4, 2")
    i("s_lshr_b32 s65, s2, 3")
    for a in range(8):
        i("s_add_u32 s%d, s65, %d" % (66 + a, a))
        i("s_and_b32 s%d, s%d, 7" % (66 + a, 66 + a))
        i("s_lshl_b32 s%d, s%d, 15" % (66 + a, 66 + a))
    for q in range(4):
        if args.wrot:
            i("s_add_u32 s%d, s65, %d" % (74 + q, q))
            i("s_and_b32 s%d, s%d, 3" % (74 + q, 74 + q))
            i("s_lshl_b32 s%d, s%d, 12" % (74 + q, 74 + q))
        else:
            i("s_movk_i32 s%d, %d" % (74 + q, q << 12))
    i("v_lshlrev_b32 v4, 4, v1")
    i("v_lshl_add_u32 v4, v7, 12, v4")
    i("v_lshlrev_b32 v5, 4, v2")
    i("v_lshl_add_u32 v5, v3, 17, v5")
    i("v_lshl_add_u32 v5, v7, 19, v5")
    i("v_and_b32 v6, 7, v0")
    i("v_lshlrev_b32 v6, 4, v6")
    i("v_lshl_add_u32 v6, v3, 14, v6")
    i("v_lshl_add_u32 v6, v7, 7, v6")
    i("v_bfe_u32 v60, v0, 3, 1")
    i("v_lshl_add_u32 v6, v60, 16, v6")
    i("v_lshlrev_b32 v61, 5, v3")
    i("v_lshl_add_u32 v61, v7, 7, v61")
    i("s_lshl_b32 s18, s63, 5")
    i("s_add_u32 s18, s18, s62")
    i("s_lshl_b32 s18, s18, 21")
    i("s_lshl_b32 s19, s64, 18")
    i("s_add_u32 s18, s18, s19")
    i("s_add_u32 s18, s18, 0x180000")
    i("s_lshl_b32 s19, s62, 8")
    i("s_lshl_b32 s26, s62, 17")
    i("s_lshl_b32 s27, s63, 10")
    i("s_mov_b32 s30, 0x40000")
    i("s_mov_b32 s31, 0x20000")
    i("s_mov_b32 s34, 0x40000")
    i("s_mov_b32 s35, 0x20000")
    i("s_sub_u32 s38, 0x400000, s19")
    i("s_mov_b32 s39, 0x20000")
    i("s_mov_b32 s42, 0x20000")
    i("s_mov_b32 s43, 0x20000")
    i("s_movk_i32 s46, 0x400")
    i("s_mov_b32 s47, 0x20000")
    i("s_mov_b32 s50, 0x1000000")
    i("s_mov_b32 s51, 0x20000")
    i("s_movk_i32 s54, 0x1000")
    i("s_mov_b32 s55, 0x20000")
    i("s_movk_i32 s58, 0x100")
    i("s_mov_b32 s59, 0x20000")
    i("s_lshl_b32 s7, s61, 1")
    i("s_add_u32 s7, s7, s63")
    i("s_lshl_b32 s78, s62, 1")
    i("s_add_u32 s78, s78, s64")
    i("s_lshl_b32 s79, s7, 17")
    i("s_lshl_b32 s80, s78, %d" % (5 if args.ytr else 11))
    i("s_add_u32 s79, s79, s80")
    i("s_lshl_b32 s80, s7, 6")
    i("s_add_u32 s80, s80, s78")
    i("s_lshl_b32 s80, s80, 3")
    i("s_add_u32 s80, s80, %d" % WS_ML)
    i("s_lshl_b32 s81, s74, 3")
    for q in range(4):
        i("s_lshr_b32 s%d, s%d, 9" % (82 + q if q < 2 else 98 + q, 74 + q))
    i("s_waitcnt lgkmcnt(0)")
    i("s_add_u32 s36, s14, s19")
    i("s_addc_u32 s37, s15, 0")
    i("s_add_u32 s44, s8, s27")
    i("s_addc_u32 s45, s9, 0")
    i("s_add_u32 s28, s10, s18")
    i("s_addc_u32 s29, s11, 0")

    kseq = [("k", k) for k in range(32)]
    vseq = [("v", k) for k in range(32)]
    wq = [("wq", k) for k in range(16)]
    wo = [("wo", k) for k in range(16)]
    A = args.a
    seq = wq[:4] + kseq[:A]
    rest = kseq[A:]
    other = wq[4:]
    while other:
        seq += other[:args.wq_ratio]
        other = other[args.wq_ratio:]
        if other:
            seq.append(rest.pop(0))
    seq += rest
    vs = vseq[:args.wo1] + wo[:4] + vseq[args.wo1:args.wo2]
    rest = vseq[args.wo2:]
    early = wo[4:]
    while rest or early:
        for _ in range(args.wo_ratio):
            if early:
                vs.append(early.pop(0))
        if rest:
            vs.append(rest.pop(0))
    seq += vs
    assert len(seq) == 96 and len(set(seq)) == 96
    pos = {t: n for n, t in enumerate(seq)}

    def is_h(t):
        return t[0] in "kv" or t[1] < 4

    gate = {("wq", 4): ("wq", args.wq_gate)} if args.wq_gate >= 0 else {}
    D = args.depth
    free = [RB + 4 * n for n in range(D)]
    reg = {}
    state = {"next": 0, "landed": -1}

    def issue():
        n = state["next"]
        if n >= len(seq) or not free:
            return False
        state["next"] = n + 1
        t = seq[n]
        kind, k = t
        reg[t] = free.pop(0)
        dst = vr(reg[t])
        if kind == "wq":
            if k & 3 == 0 and k:
                i("s_lshl_b32 s81, s%d, 3" % (74 + (k >> 2)))
            i("buffer_load_dwordx4 %s, v5, s[36:39], s81 offen%s" % (dst, wflag), tag=t)
            if k & 3 != 3:
                i("s_add_u32 s81, s81, 0x2000")
        elif kind in "kv":
            i("buffer_load_dwordx4 %s, v4, %s, s%d offen offset:%d%s" % (
                dst, "s[28:31]" if kind == "k" else "s[32:35]", 66 + (k >> 2), (k & 3) * 1024, kvflag), tag=t)
        else:
            i("buffer_load_dwordx4 %s, v6, s[40:43], s%d offen offset:%d%s" % (
                dst, 74 + (k >> 2), (k & 3) * 1024, wflag), tag=t)
        return True

    def pump(W=None):
        W = W or args.w
        while state["next"] < len(seq) and free:
            t = seq[state["next"]]
            if t in gate and pos[gate[t]] > state["landed"]:
                break
            if is_h(t) and sum(is_h(u) for u in seq[state["landed"] + 1:state["next"]]) >= W:
                break
            issue()

    def wait(t, W=None):
        while state["landed"] < pos[t]:
            nxt = state["landed"] + 1
            assert nxt < state["next"], ("stuck", t)
            lim = min(pos[t], state["next"] - 1)
            while nxt < lim and not is_h(seq[nxt]):
                nxt += 1
            if not free or state["next"] >= len(seq):
                nxt = lim
            e.wait_vm(seq[nxt])
            state["landed"] = nxt
            pump(W)

    def release(t):
        free.append(reg[t])

    for n in range(4):
        issue()
    for q in range(4):
        i("buffer_load_dwordx2 %s, v61, s[44:47], s%d offen" % (vr(XD + 2 * q, 2), [82, 83, 100, 101][q]), tag="x%d" % q)
    i("s_mov_b32 s48, s24")
    i("s_mov_b32 s49, s25")
    i("s_mov_b32 s56, s22")
    i("s_mov_b32 s57, s23")
    i("s_add_u32 s32, s12, s18")
    i("s_addc_u32 s33, s13, 0")
    i("s_add_u32 s40, s16, s26")
    i("s_addc_u32 s41, s17, 0")
    i("s_mov_b32 s52, s20")
    i("s_mov_b32 s53, s21")
    i("s_lshl_b32 s6, s2, 3")
    i("s_add_u32 s6, s6, s3")
    i("s_cmp_lg_u32 s6, 7")
    i("s_cbranch_scc1 L_nopoison")
    for r in range(4):
        i("v_mov_b32 v%d, -1" % (44 + r))
    i("v_lshlrev_b32 v48, 4, v1")
    i("s_mov_b32 s4, %d" % WS_ML)
    i("buffer_store_dwordx4 v[44:47], v48, s[48:51], s4 offen sc1")
    i("buffer_store_dwordx4 v[44:47], v48, s[48:51], s4 offen offset:1024 sc1")
    del e.vm[-2:]
    e.raw("L_nopoison:")
    pump(args.w0)
    i("v_and_b32 v60, 1, v2")
    i("v_lshlrev_b32 v60, 4, v60")
    i("v_mov_b32 v62, 0xffff")
    i("v_lshlrev_b32 v62, v60, v62")
    i("v_bfe_u32 v60, v0, 1, 2")
    for r in range(4):
        i("v_cmp_eq_u32 vcc, %d, v60" % r)
        i("v_cndmask_b32 v%d, 0, v62, vcc" % (MASK + r))
    i("s_mov_b32 s4, 0x0c0c0c0c")
    i("v_mov_b32 v60, 0x01000100")
    i("v_mov_b32 v62, 0x03020302")
    for r in range(4):
        i("v_bfi_b32 v%d, v%d, v60, s4" % (SEL + r, MASK + r))
        i("v_bfi_b32 v%d, v%d, v62, s4" % (SEL + 4 + r, MASK + r))

    def sel_a(k, src_dw):
        a = AB[k & 1]
        for r in range(4):
            i("v_perm_b32 v%d, v%d, v%d, v%d" % (a + r, src_dw + (k >> 1), src_dw + (k >> 1), SEL + 4 * (k & 1) + r))
        return a

    i("v_lshlrev_b32 v60, 5, v2")
    i("v_lshl_add_u32 v60, v3, 4, v60")
    i("s_mul_i32 s5, s3, %d" % PSTR)
    i("v_add_u32 v60, s5, v60")
    i("v_and_b32 v61, 3, v0")
    i("v_mul_u32_u24 v61, %d, v61" % (2 * PSTR))
    i("v_lshrrev_b32 v62, 2, v0")
    i("v_lshl_add_u32 v61, v62, 2, v61")
    i("v_lshlrev_b32 v62, 1, v62")

    e.wait_vm("x3")
    state["landed"] = 3
    pump()
    signalled = False

    def signal():
        i("s_cmp_lg_u32 s6, 7")
        i("s_cbranch_scc1 L_nosignal")
        i("v_mov_b32 v48, 1")
        i("v_mov_b32 v49, 0")
        i("s_mov_b64 exec, 1")
        i("buffer_store_dword v48, v49, s[56:59], 0 offen sc1")
        e.vm.pop()
        i("s_mov_b64 exec, -1")
        e.raw("L_nosignal:")

    def ypoison():
        assert state["next"] > pos[("wq", 15)]
        i("v_and_b32 v5, 7, v0")
        i("v_lshl_add_u32 v5, v7, 3, v5")
        i("v_lshlrev_b32 v5, %d, v5" % (11 if args.ytr else 5))
        i("v_lshl_add_u32 v5, v3, 3, v5")
        i("v_mov_b32 v48, -1")
        i("v_mov_b32 v49, -1")
        i("s_mov_b32 exec_lo, 0x00ff00ff")
        i("s_mov_b32 exec_hi, 0x00ff00ff")
        if not args.noproto & 1:
            i("buffer_store_dwordx2 v[48:49], v5, s[48:51], s79 offen sc1", tag="yp")
        i("s_mov_b64 exec, -1")

    for k in range(16):
        a = sel_a(k, XD)
        wait(("wq", k))
        if k == 4:
            signal()
        i("v_mfma_f32_16x16x32_bf16 %s, %s, %s, %s" % (vr(ACC), vr(a), vr(reg[("wq", k)]), "0" if k == 0 else vr(ACC)))
        release(("wq", k))
        pump()
    pump(args.w + args.bq)
    ypoison()

    def reduce8(pbase, qbase, mid=None):
        i("v_add_u32 v63, %d, v61" % pbase)
        i("s_mov_b32 exec_hi, 0")
        i("ds_write_b128 v60, %s offset:%d" % (vr(ACC), pbase))
        i("s_mov_b32 exec_hi, -1")
        if mid:
            mid()
        i("s_waitcnt lgkmcnt(0)")
        i("s_barrier")
        i("ds_read2_b32 v[46:47], v63 offset0:0 offset1:%d" % (PSTR // 4))
        i("s_waitcnt lgkmcnt(0)")
        i("v_add_f32 v46, v46, v47")
        i("v_add_f32_dpp v46, v46, v46 quad_perm:[1,0,3,2] row_mask:0xf bank_mask:0xf")
        i("v_add_f32_dpp v46, v46, v46 quad_perm:[2,3,0,1] row_mask:0xf bank_mask:0xf")
        i("v_cvt_pk_bf16_f32 v46, v46, v46")
        i("ds_write_b16 v62, v46 offset:%d" % qbase)
        i("s_waitcnt lgkmcnt(0)")
        i("s_barrier")

    stamp(1)
    reduce8(L_QP, L_QB, mid=lambda: i("v_lshlrev_b32 v44, 4, v2"))
    i("ds_read_b128 %s, v44 offset:%d" % (vr(QD), L_QB))
    if args.catch:
        wait(seq[state["next"] - args.w])
    i("s_waitcnt lgkmcnt(0)")
    stamp(2)


    def merge(a):
        t = T[a & 1]
        i("v_add_f32_dpp v%d, v%d, v%d row_ror:8 row_mask:0xf bank_mask:0x3" % (t, t, t))
        i("v_add_f32_dpp v%d, v%d, v%d row_ror:8 row_mask:0xf bank_mask:0x3" % (t + 2, t + 2, t + 2))
        i("v_add_f32_dpp v%d, v%d, v%d row_ror:8 row_mask:0xf bank_mask:0xc" % (t, t + 1, t + 1))
        i("v_add_f32_dpp v%d, v%d, v%d row_ror:8 row_mask:0xf bank_mask:0xc" % (t + 2, t + 3, t + 3))
        s = S + a
        i("v_add_f32_dpp v%d, v%d, v%d row_half_mirror row_mask:0xf bank_mask:0x5" % (s, t, t))
        i("v_add_f32_dpp v%d, v%d, v%d row_half_mirror row_mask:0xf bank_mask:0xa" % (s, t + 2, t + 2))
        i("v_add_f32_dpp v%d, v%d, v%d quad_perm:[1,0,3,2] row_mask:0xf bank_mask:0xf" % (s, s, s))
        i("v_add_f32_dpp v%d, v%d, v%d quad_perm:[2,3,0,1] row_mask:0xf bank_mask:0xf" % (s, s, s))

    for a in range(8):
        t = T[a & 1]
        wait(("k", 4 * a + 3))
        for d in range(4):
            for q in range(4):
                kr = reg[("k", 4 * a + q)] + d
                i("v_dot2_f32_bf16 v%d, v%d, v%d, %s" % (t + q, kr, QD + d, "0" if d == 0 else "v%d" % (t + q)))
        for q in range(4):
            release(("k", 4 * a + q))
        pump()
        if a == args.flag_at and not args.noproto & 2:
            i("s_cmp_lg_u32 s3, %d" % CW)
            i("s_cbranch_scc1 L_noflag")
            i("v_mov_b32 v21, 0")
            i("buffer_load_dword v20, v21, s[56:59], 0 offen sc1")
            e.vm.pop()
            e.raw("L_noflag:")
            flag_pos = state["next"]
        merge(a)
    pump(args.w + args.bk)
    stamp(3)

    i("s_mov_b32 s4, 0xffff0000")
    i("s_mov_b32 s5, 0x%x" % SCALE)
    i("s_mov_b32 s6, %s" % LOG2E)
    for a in range(8):
        i("v_cvt_pk_bf16_f32 v%d, v%d, v%d" % (S + a, S + a, S + a))
    for a in range(8):
        i("v_and_b32 v%d, s4, v%d" % (S + a, S + a))
    for a in range(8):
        i("v_mul_f32 v%d, s5, v%d" % (S + a, S + a))
    for a in range(8):
        i("v_cvt_pk_bf16_f32 v%d, v%d, v%d" % (S + a, S + a, S + a))
    for a in range(8):
        i("v_and_b32 v%d, s4, v%d" % (S + a, S + a))
    i("v_max3_f32 v44, v%d, v%d, v%d" % (S, S + 1, S + 2))
    i("v_max3_f32 v45, v%d, v%d, v%d" % (S + 3, S + 4, S + 5))
    i("v_max3_f32 v44, v44, v%d, v%d" % (S + 6, S + 7))
    i("v_max_f32 v44, v44, v45")

    def allred(op, r, t):
        i("%s_dpp v%d, v%d, v%d row_ror:4 row_mask:0xf bank_mask:0xf" % (op, r, r, r))
        i("%s_dpp v%d, v%d, v%d row_ror:8 row_mask:0xf bank_mask:0xf" % (op, r, r, r))
        i("v_mov_b32 v%d, v%d" % (t, r))
        i("v_permlane16_swap_b32 v%d, v%d" % (r, t))
        i("%s v%d, v%d, v%d" % (op, r, r, t))
        i("v_mov_b32 v%d, v%d" % (t, r))
        i("v_permlane32_swap_b32 v%d, v%d" % (r, t))
        i("%s v%d, v%d, v%d" % (op, r, r, t))

    allred("v_max_f32", 44, 45)
    for a in range(8):
        i("v_sub_f32 v%d, v%d, v44" % (S + a, S + a))
    for a in range(8):
        i("v_mul_f32 v%d, s6, v%d" % (S + a, S + a))
    for a in range(8):
        i("v_exp_f32 v%d, v%d" % (S + a, S + a))
    i("v_add_f32 v45, v%d, v%d" % (S, S + 1))
    i("v_add_f32 v46, v%d, v%d" % (S + 2, S + 3))
    i("v_add_f32 v47, v%d, v%d" % (S + 4, S + 5))
    i("v_add_f32 v48, v%d, v%d" % (S + 6, S + 7))
    i("v_add_f32 v45, v45, v46")
    i("v_add_f32 v47, v47, v48")
    i("v_add_f32 v45, v45, v47")
    allred("v_add_f32", 45, 46)
    i("s_lshl_b32 s5, s3, 3")
    i("v_mov_b32 v46, s5")
    i("ds_write_b64 v46, v[44:45] offset:%d" % L_ML)
    for a in range(8):
        i("v_cvt_pk_bf16_f32 v%d, v%d, v%d" % (S + a, S + a, S + a))
    bank = [0, 2, 1, 3]

    def pv(k):
        a = AB[k & 1]
        for r in range(4):
            i("v_and_b32_dpp v%d, v%d, v%d row_newbcast:%d row_mask:0xf bank_mask:0xf" % (
                a + r, S + (k >> 2), MASK + r, 4 * bank[k & 3]))
        wait(("v", k))
        i("v_mfma_f32_16x16x32_bf16 %s, %s, %s, %s" % (vr(ACC), vr(a), vr(reg[("v", k)]), "0" if k == 0 else vr(ACC)))
        release(("v", k))
        pump()

    for k in range(args.mlat):
        pv(k)
    pump(args.w + args.bk)
    i("v_and_b32 v46, 7, v0")
    i("v_lshlrev_b32 v46, 3, v46")
    i("s_waitcnt lgkmcnt(0)")
    assert "yp" not in e.vm
    i("s_barrier")
    i("ds_read_b64 v[46:47], v46 offset:%d" % L_ML)
    if args.catch:
        wait(seq[state["next"] - args.w])
    i("v_mov_b32 v50, 0")
    i("s_waitcnt lgkmcnt(0)")
    i("v_mov_b32 v48, v46")
    i("v_max_f32_dpp v48, v48, v48 quad_perm:[1,0,3,2] row_mask:0xf bank_mask:0xf")
    i("v_max_f32_dpp v48, v48, v48 quad_perm:[2,3,0,1] row_mask:0xf bank_mask:0xf")
    i("v_max_f32_dpp v48, v48, v48 row_half_mirror row_mask:0xf bank_mask:0xf")
    i("v_sub_f32 v46, v46, v48")
    i("v_sub_f32 v44, v44, v48")
    i("v_mul_f32 v46, s6, v46")
    i("v_mul_f32 v44, s6, v44")
    i("v_exp_f32 v46, v46")
    i("v_exp_f32 v44, v44")
    i("v_mul_f32 v49, v46, v47")
    i("v_add_f32_dpp v49, v49, v49 quad_perm:[1,0,3,2] row_mask:0xf bank_mask:0xf")
    i("v_add_f32_dpp v49, v49, v49 quad_perm:[2,3,0,1] row_mask:0xf bank_mask:0xf")
    i("v_add_f32_dpp v49, v49, v49 row_half_mirror row_mask:0xf bank_mask:0xf")
    i("s_cmp_lg_u32 s3, %d" % (77 if args.noproto & 2 else CW))
    i("s_cbranch_scc1 L_noml")
    if not args.noproto & 2:
        assert state["landed"] >= flag_pos
    i("s_mov_b32 s5, 0")
    e.label("L_flag")
    i("v_readfirstlane_b32 s4, v20")
    i("s_add_u32 s5, s5, 1")
    i("s_cmp_eq_u32 s4, 1")
    i("s_cbranch_scc1 L_flag_ok")
    i("s_cmp_ge_u32 s5, %d" % SPIN_MAX)
    i("s_cbranch_scc1 L_flag_ok")
    i("buffer_load_dword v20, v50, s[56:59], 0 offen sc1")
    e.vm.pop()
    i("s_waitcnt vmcnt(0)")
    i("s_branch L_flag")
    e.label("L_flag_ok")
    i("v_min_u32 v48, -2, v48")
    i("v_min_u32 v49, -2, v49")
    i("s_mov_b64 exec, 1")
    i("buffer_store_dwordx2 v[48:49], v50, s[48:51], s80 offen sc1")
    e.vm.pop()
    i("s_mov_b64 exec, -1")
    e.raw("L_noml:")
    i("v_bfe_u32 v45, v0, 3, 1")
    i("v_lshlrev_b32 v45, 7, v45")
    i("v_lshl_add_u32 v45, v3, 5, v45")
    for q in range(4):
        i("v_add_u32 v%d, s%d, v45" % (QD + q, [82, 83, 100, 101][q]))
    i("s_lshl_b32 s6, s7, 9")
    i("s_add_u32 s6, s6, %d" % WS_ML)
    i("v_lshlrev_b32 v45, 3, v1")
    for k in range(args.mlat, 32):
        pv(k)
        if k == args.ml_at and not args.noproto & 2:
            i("s_cmp_lg_u32 s3, %d" % CW)
            i("s_cbranch_scc1 L_nomlpre")
            i("buffer_load_dwordx2 v[48:49], v45, s[48:51], s6 offen sc1")
            e.vm.pop()
            e.raw("L_nomlpre:")
    stamp(4)
    for r in range(4):
        i("v_mul_f32 v%d, v44, v%d" % (ACC + r, ACC + r))
    reduce8(L_OP, L_OB)
    for q in range(4):
        i("ds_read_b64 %s, v%d offset:%d" % (vr(XD + 2 * q, 2), QD + q, L_OB))
    i("s_waitcnt lgkmcnt(0)")
    stamp(5)
    ACC2 = 52
    for k in range(16):
        a = sel_a(k, XD)
        wait(("wo", k))
        acc = ACC if k & 1 == 0 or not args.acc2 else ACC2
        first = k == 0 or (k == 1 and args.acc2)
        i("v_mfma_f32_16x16x32_bf16 %s, %s, %s, %s" % (vr(acc), vr(a), vr(reg[("wo", k)]), "0" if first else vr(acc)))
        release(("wo", k))
        pump()
    i("s_mov_b32 s4, 0x00ff00ff")
    i("s_mov_b32 s5, 0x00ff00ff")
    if args.acc2:
        for r in range(4):
            i("v_add_f32 v%d, v%d, v%d" % (ACC + r, ACC + r, ACC2 + r))
    i("v_permlane32_swap_b32 v%d, v%d" % (ACC, ACC + 1))
    i("v_permlane32_swap_b32 v%d, v%d" % (ACC + 2, ACC + 3))
    i("v_add_f32_dpp v46, v%d, v%d row_ror:8 row_mask:0xf bank_mask:0xf" % (ACC + 1, ACC))
    i("v_add_f32_dpp v47, v%d, v%d row_ror:8 row_mask:0xf bank_mask:0xf" % (ACC + 3, ACC + 2))
    i("v_min_u32 v46, -2, v46")
    i("v_min_u32 v47, -2, v47")
    i("s_mov_b64 exec, s[4:5]")
    i("buffer_store_dwordx2 v[46:47], v5, s[48:51], s79 offen sc1")
    i("s_cmp_lg_u32 s3, %d" % CW)
    i("s_cbranch_scc1 L_end")

    e.vm = []
    stamp(6)
    i("s_mov_b64 exec, -1")
    i("s_mov_b32 s82, 0")
    i("s_lshl_b32 s5, s7, 17")
    i("s_lshl_b32 s4, s78, %d" % (11 if args.ytr else 5))
    i("s_add_u32 s5, s5, s4")
    i("v_lshlrev_b32 v16, %d, v1" % (5 if args.ytr else 11))
    i("s_waitcnt vmcnt(1)")
    if args.nopoll:
        i("s_branch L_y_ok")
    e.label("L_ml")
    i("v_max_u32 v18, v48, v49")
    i("v_cmp_eq_u32 vcc, -1, v18")
    i("s_add_u32 s82, s82, 1")
    i("s_nop 1")
    i("s_cbranch_vccz L_ml_ok")
    i("s_cmp_ge_u32 s82, %d" % SPIN_MAX)
    i("s_cbranch_scc1 L_ml_ok")
    i("buffer_load_dwordx2 v[48:49], v45, s[48:51], s6 offen sc1")
    i("s_waitcnt vmcnt(0)")
    i("s_branch L_ml")
    e.label("L_ml_ok")
    i("buffer_load_dwordx4 v[8:11], v16, s[48:51], s5 offen sc1")
    i("buffer_load_dwordx4 v[12:15], v16, s[48:51], s5 offen offset:16 sc1")
    i("s_lshl_b32 s17, s63, 11")
    i("s_lshl_b32 s18, s61, 10")
    i("s_add_u32 s17, s17, s18")
    i("s_lshl_b32 s18, s78, 4")
    i("s_add_u32 s17, s17, s18")
    i("v_bfe_u32 v3, v1, 4, 1")
    i("v_lshlrev_b32 v3, 1, v3")
    i("v_bfe_u32 v18, v1, 5, 1")
    i("v_add_u32 v3, v3, v18")
    i("v_bfe_u32 v18, v1, 3, 1")
    i("v_lshl_add_u32 v3, v3, 1, v18")
    i("v_lshlrev_b32 v3, 1, v3")
    i("v_max_f32_dpp v6, v48, v48 quad_perm:[1,0,3,2] row_mask:0xf bank_mask:0xf")
    i("v_sub_f32 v4, v48, v6")
    i("v_mul_f32 v4, %s, v4" % LOG2E)
    i("v_exp_f32 v4, v4")
    i("v_mul_f32 v5, v49, v4")
    i("v_add_f32_dpp v5, v5, v5 quad_perm:[1,0,3,2] row_mask:0xf bank_mask:0xf")
    i("v_rcp_f32 v5, v5")
    i("v_mul_f32 v4, v4, v5")
    P = args.polls
    e.label("L_y")
    i("s_waitcnt vmcnt(%d)" % 0)
    e.label("L_y2")
    i("v_max3_u32 v18, v8, v9, v10")
    i("v_max3_u32 v19, v11, v12, v13")
    i("v_max3_u32 v18, v18, v14, v15")
    i("v_max_u32 v18, v18, v19")
    i("v_cmp_eq_u32 vcc, -1, v18")
    i("s_add_u32 s82, s82, 1")
    i("s_nop 1")
    i("s_cbranch_vccz L_y_ok")
    i("s_cmp_ge_u32 s82, %d" % SPIN_MAX)
    i("s_cbranch_scc1 L_y_ok")
    i("s_mov_b64 exec, vcc")
    if args.sleep:
        i("s_sleep %d" % args.sleep)
    i("buffer_load_dwordx4 v[8:11], v16, s[48:51], s5 offen sc1")
    i("buffer_load_dwordx4 v[12:15], v16, s[48:51], s5 offen offset:16 sc1")
    if P > 1:
        i("s_bcnt1_i32_b64 s83, vcc")
        i("s_cmp_gt_u32 s83, %d" % args.few)
        i("s_cbranch_scc1 L_y")
        i("s_waitcnt vmcnt(%d)" % (2 * (P - 1)))
        i("s_branch L_y2")
    else:
        i("s_branch L_y")
    e.label("L_y_ok")
    i("s_mov_b64 exec, -1")
    for r in range(8):
        i("v_mul_f32 v%d, v4, v%d" % (24 + r, 8 + r))
    for r in range(0, 8, 2):
        i("v_permlane32_swap_b32 v%d, v%d" % (24 + r, 25 + r))
    for r in range(0, 8, 2):
        i("v_add_f32 v%d, v%d, v%d" % (24 + r, 24 + r, 25 + r))
    i("v_permlane16_swap_b32 v24, v26")
    i("v_permlane16_swap_b32 v28, v30")
    i("v_add_f32 v24, v24, v26")
    i("v_add_f32 v28, v28, v30")
    i("v_add_f32_dpp v24, v24, v24 row_ror:8 row_mask:0xf bank_mask:0x3")
    i("v_add_f32_dpp v24, v28, v28 row_ror:8 row_mask:0xf bank_mask:0xc")
    i("v_add_f32_dpp v24, v24, v24 row_half_mirror row_mask:0xf bank_mask:0xf")
    i("v_add_f32_dpp v24, v24, v24 quad_perm:[1,0,3,2] row_mask:0xf bank_mask:0xf")
    i("v_add_f32_dpp v24, v24, v24 quad_perm:[2,3,0,1] row_mask:0xf bank_mask:0xf")
    i("v_cvt_pk_bf16_f32 v24, v24, v24")
    i("s_mov_b32 exec_lo, 0x01010101")
    i("s_mov_b32 exec_hi, 0x01010101")
    i("buffer_store_short v24, v3, s[52:55], s17 offen")
    if args.stamps:
        stamp(7)
        i("s_waitcnt lgkmcnt(0)")
        i("s_mov_b64 exec, 1")
        for r in range(16):
            i("v_mov_b32 v%d, s%d" % (32 + r, 84 + r))
        i("s_getreg_b32 s72, hwreg(HW_REG_XCC_ID)")
        i("v_mov_b32 v35, s72")
        if args.xid:
            i("s_xor_b32 s2, s2, %d" % args.xid)
        i("s_lshl_b32 s73, s2, 6")
        i("s_add_u32 s73, s73, %d" % STAMP_OFF)
        for r in range(4):
            i("buffer_store_dwordx4 %s, v50, s[48:51], s73 offen offset:%d" % (vr(32 + 4 * r), 16 * r))
    e.raw("L_end:")
    i("s_endpgm")

    out = HEADER
    out += "; @launch grid=(256,1,1) block=(512,1,1) lds=%d\n" % LDS_BYTES
    out += '.amdgcn_target "amdgcn-amd-amdhsa--gfx950"\n.text\n'
    out += e.text()
    out += '.section .rodata,"a"\n'
    nv = max(args.nv, (RB + 4 * args.depth + 7) // 8 * 8)
    for name, ns in ((KN, 102),):
        out += ".p2align 6\n.amdhsa_kernel %s\n" % name
        out += "  .amdhsa_next_free_vgpr %d\n  .amdhsa_next_free_sgpr %d\n  .amdhsa_accum_offset %d\n" % (nv, ns, nv)
        out += "  .amdhsa_group_segment_fixed_size 0\n  .amdhsa_kernarg_size 104\n"
        out += "  .amdhsa_user_sgpr_count 2\n  .amdhsa_user_sgpr_kernarg_segment_ptr 1\n"
        out += "  .amdhsa_system_sgpr_workgroup_id_x 1\n.end_amdhsa_kernel\n"
    return out


if __name__ == "__main__":
    ap = argparse.ArgumentParser()
    ap.add_argument("-o", default="cdna_kernels/%s.s" % NAME)
    ap.add_argument("--xid", type=int, default=0)
    ap.add_argument("--nopoll", type=int, default=0)
    ap.add_argument("--nt", type=int, default=1)
    ap.add_argument("--wnt", type=int, default=0)
    ap.add_argument("--wrot", type=int, default=1)
    ap.add_argument("--a", type=int, default=4)
    ap.add_argument("--wo1", type=int, default=8)
    ap.add_argument("--wo2", type=int, default=16)
    ap.add_argument("--wq_ratio", type=int, default=3)
    ap.add_argument("--wq_gate", type=int, default=3)
    ap.add_argument("--catch", type=int, default=1)
    ap.add_argument("--noproto", type=int, default=0)
    ap.add_argument("--w", type=int, default=4)
    ap.add_argument("--w0", type=int, default=8)
    ap.add_argument("--bq", type=int, default=4)
    ap.add_argument("--bk", type=int, default=2)
    ap.add_argument("--wo_ratio", type=int, default=1)
    ap.add_argument("--mlat", type=int, default=0)
    ap.add_argument("--acc2", type=int, default=1)
    ap.add_argument("--cw", type=int, default=0)
    ap.add_argument("--flag_at", type=int, default=4)
    ap.add_argument("--ml_at", type=int, default=20)
    ap.add_argument("--depth", type=int, default=32)
    ap.add_argument("--nv", type=int, default=168)
    ap.add_argument("--ytr", type=int, default=0)
    ap.add_argument("--sleep", type=int, default=0)
    ap.add_argument("--polls", type=int, default=1)
    ap.add_argument("--few", type=int, default=4)
    ap.add_argument("--stamps", type=int, default=0)
    args = ap.parse_args()
    open(args.o, "w").write(gen(args))
```

```python
import sys, os, argparse
sys.path.insert(0, os.path.dirname(__file__))
from emit import Emitter

NAME = "concat_heads__sliding_block_cached__sliding_block_cached__decode"
HEADER = open("cdna_kernels/%s.s.ref" % NAME).read().split("; Override launch geometry")[0]

LOG2E = "0x3fb8aa3b"
SCALE = 0x3DB504F3

PSTR = 528
L_QP = 0
L_QB = 4352
L_ML = 4608
L_OP = 4864
L_OB = 9216
LDS_BYTES = 9472

WS_ML = 512 * 1024
STAMP_OFF = 8 << 20
SPIN_MAX = 1 << 16


def vr(b, n=4):
    return "v[%d:%d]" % (b, b + n - 1)


def gen(args):
    e = Emitter()
    i = e.i
    kvflag = " nt" if args.nt else ""
    wflag = " nt" if args.wnt else ""
    if args.wflags:
        wflag = " " + args.wflags.replace("+", " ")
    MASK, SEL, XD, QD = 8, 12, 20, 28
    AB = [32, 36]
    ACC = 40
    T = [44, 48]
    S = 52
    RB = 68
    KN = NAME + "_kernel"
    CW = args.cw

    def stamp(k):
        if args.stamps:
            i("s_memrealtime s[%d:%d]" % (84 + 2 * k, 85 + 2 * k))

    e.raw(".globl %s\n.p2align 8\n.type %s,@function\n%s:" % (KN, KN, KN))
    i("s_cmp_ge_u32 s2, 256")
    i("s_cbranch_scc1 L_end")
    stamp(0)
    if args.xid:
        i("s_xor_b32 s2, s2, %d" % args.xid)
    i("s_and_b32 s60, s2, 7")
    i("s_lshl_b32 s60, s60, 3")
    i("s_lshr_b32 s61, s2, 5")
    i("s_add_u32 s60, s60, s61")
    i("s_lshr_b32 s61, s60, 5")
    i("s_mul_i32 s62, s61, 40")
    i("s_add_u32 s4, s0, s62")
    i("s_addc_u32 s5, s1, 0")
    i("s_load_dwordx8 s[8:15], s[4:5], 0")
    i("s_load_dwordx2 s[16:17], s[4:5], 32")
    i("s_load_dwordx4 s[20:23], s[0:1], 80")
    i("s_load_dwordx2 s[24:25], s[0:1], 96")
    i("s_and_b32 s62, s60, 31")
    i("s_bfe_u32 s63, s2, 0x10004")
    i("s_bfe_u32 s64, s2, 0x10003")
    i("v_and_b32 v1, 63, v0")
    i("v_lshrrev_b32 v7, 6, v0")
    i("v_and_b32 v2, 15, v0")
    i("v_readfirstlane_b32 s3, v7")
    i("v_bfe_u32 v3, v0, 4, 2")
    i("s_lshr_b32 s65, s2, 3")
    for a in range(8):
        i("s_add_u32 s%d, s65, %d" % (66 + a, a))
        i("s_and_b32 s%d, s%d, 7" % (66 + a, 66 + a))
        i("s_lshl_b32 s%d, s%d, 15" % (66 + a, 66 + a))
    for q in range(4):
        if args.wrot:
            i("s_add_u32 s%d, s65, %d" % (74 + q, q))
            i("s_and_b32 s%d, s%d, 3" % (74 + q, 74 + q))
            i("s_lshl_b32 s%d, s%d, 12" % (74 + q, 74 + q))
        else:
            i("s_movk_i32 s%d, %d" % (74 + q, q << 12))
    i("v_lshlrev_b32 v4, 4, v1")
    i("v_lshl_add_u32 v4, v7, 12, v4")
    i("v_lshlrev_b32 v5, 4, v2")
    QS, GS, WS = [int(x) for x in args.wqmap.split(",")]
    i("v_lshl_add_u32 v5, v3, %d, v5" % GS)
    i("v_lshl_add_u32 v5, v7, %d, v5" % WS)
    i("v_and_b32 v6, 7, v0")
    i("v_lshlrev_b32 v6, 4, v6")
    i("v_lshl_add_u32 v6, v3, 14, v6")
    i("v_lshl_add_u32 v6, v7, 7, v6")
    i("v_bfe_u32 v60, v0, 3, 1")
    i("v_lshl_add_u32 v6, v60, 16, v6")
    i("v_lshlrev_b32 v61, %d, v3" % (GS - 12))
    i("v_lshl_add_u32 v61, v7, %d, v61" % (WS - 12))
    i("s_lshl_b32 s18, s63, 5")
    i("s_add_u32 s18, s18, s62")
    i("s_lshl_b32 s18, s18, 21")
    i("s_lshl_b32 s19, s64, 18")
    i("s_add_u32 s18, s18, s19")
    i("s_add_u32 s18, s18, 0x180000")
    i("s_lshl_b32 s19, s62, 8")
    i("s_lshl_b32 s26, s62, 17")
    i("s_lshl_b32 s27, s63, 10")
    i("s_mov_b32 s30, 0x40000")
    i("s_mov_b32 s31, 0x20000")
    i("s_mov_b32 s34, 0x40000")
    i("s_mov_b32 s35, 0x20000")
    i("s_sub_u32 s38, 0x400000, s19")
    i("s_mov_b32 s39, 0x20000")
    i("s_mov_b32 s42, 0x20000")
    i("s_mov_b32 s43, 0x20000")
    i("s_movk_i32 s46, 0x400")
    i("s_mov_b32 s47, 0x20000")
    i("s_mov_b32 s50, 0x1000000")
    i("s_mov_b32 s51, 0x20000")
    i("s_movk_i32 s54, 0x1000")
    i("s_mov_b32 s55, 0x20000")
    i("s_movk_i32 s58, 0x100")
    i("s_mov_b32 s59, 0x20000")
    i("s_lshl_b32 s7, s61, 1")
    i("s_add_u32 s7, s7, s63")
    i("s_lshl_b32 s78, s62, 1")
    i("s_add_u32 s78, s78, s64")
    i("s_lshl_b32 s79, s7, 17")
    i("s_lshl_b32 s80, s78, %d" % (5 if args.ytr else 11))
    i("s_add_u32 s79, s79, s80")
    i("s_lshl_b32 s80, s7, 6")
    i("s_add_u32 s80, s80, s78")
    i("s_lshl_b32 s80, s80, 3")
    i("s_add_u32 s80, s80, %d" % WS_ML)
    i("s_lshl_b32 s81, s74, %d" % (QS - 12))
    for q in range(4):
        i("s_lshr_b32 s%d, s%d, 9" % (82 + q if q < 2 else 98 + q, 74 + q))
    i("s_waitcnt lgkmcnt(0)")
    i("s_add_u32 s36, s14, s19")
    i("s_addc_u32 s37, s15, 0")
    i("s_add_u32 s44, s8, s27")
    i("s_addc_u32 s45, s9, 0")
    i("s_add_u32 s28, s10, s18")
    i("s_addc_u32 s29, s11, 0")

    kseq = [("k", k) for k in range(32)]
    vseq = [("v", k) for k in range(32)]
    wq = [("wq", k) for k in range(16)]
    wo = [("wo", k) for k in range(16)]
    A = args.a
    seq = wq[:4] + kseq[:A]
    rest = kseq[A:]
    other = wq[4:]
    while other:
        seq += other[:args.wq_ratio]
        other = other[args.wq_ratio:]
        if other:
            for _ in range(args.wq_k):
                seq.append(rest.pop(0))
    seq += rest
    vs = vseq[:args.wo1] + wo[:4] + vseq[args.wo1:args.wo2]
    rest = vseq[args.wo2:]
    early = wo[4:]
    while rest or early:
        for _ in range(args.wo_ratio):
            if early:
                vs.append(early.pop(0))
        for _ in range(args.wo_v):
            if rest:
                vs.append(rest.pop(0))
    seq += vs
    assert len(seq) == 96 and len(set(seq)) == 96
    pos = {t: n for n, t in enumerate(seq)}

    def is_h(t):
        return t[0] in "kv" or t[1] < 4

    gate = {("wq", 4): ("wq", args.wq_gate)} if args.wq_gate >= 0 else {}
    D = args.depth
    free = [RB + 4 * n for n in range(D)]
    reg = {}
    state = {"next": 0, "landed": -1, "W": args.wqw or args.w}

    def issue():
        n = state["next"]
        if n >= len(seq) or not free:
            return False
        state["next"] = n + 1
        t = seq[n]
        kind, k = t
        reg[t] = free.pop(0)
        dst = vr(reg[t])
        if (kind == "wq" and k >= 4 and args.skipw & 1) or (kind == "wo" and k >= 4 and args.skipw & 2):
            pass
        elif kind == "wq":
            if k & 3 == 0 and k:
                i("s_lshl_b32 s81, s%d, %d" % (74 + (k >> 2), QS - 12))
            i("buffer_load_dwordx4 %s, v5, s[36:39], s81 offen%s" % (dst, wflag), tag=t)
            if k & 3 != 3:
                i("s_add_u32 s81, s81, 0x2000")
        elif kind in "kv":
            i("buffer_load_dwordx4 %s, v4, %s, s%d offen offset:%d%s" % (
                dst, "s[28:31]" if kind == "k" else "s[32:35]", 66 + (k >> 2), (k & 3) * 1024, kvflag), tag=t)
        else:
            i("buffer_load_dwordx4 %s, v6, s[40:43], s%d offen offset:%d%s" % (
                dst, 74 + (k >> 2), (k & 3) * 1024, wflag), tag=t)
        return True

    def pump(W=None):
        W = W or state["W"]
        while state["next"] < len(seq) and free:
            t = seq[state["next"]]
            if t in gate and pos[gate[t]] > state["landed"]:
                break
            if is_h(t) and sum(is_h(u) for u in seq[state["landed"] + 1:state["next"]]) >= W:
                break
            issue()

    def wait(t, W=None):
        while state["landed"] < pos[t]:
            nxt = state["landed"] + 1
            assert nxt < state["next"], ("stuck", t)
            lim = min(pos[t], state["next"] - 1)
            while nxt < lim and not is_h(seq[nxt]):
                nxt += 1
            if not free or state["next"] >= len(seq):
                nxt = lim
            e.wait_vm(seq[nxt])
            state["landed"] = nxt
            pump(W)

    def release(t):
        free.append(reg[t])

    def ypoison():
        i("v_and_b32 v65, 7, v0")
        i("v_lshl_add_u32 v65, v7, 3, v65")
        i("v_lshlrev_b32 v65, %d, v65" % (11 if args.ytr else 5))
        i("v_lshl_add_u32 v65, v3, 4, v65")
        for r in range(4):
            i("v_mov_b32 v%d, -1" % (48 + r))
        i("s_mov_b64 exec, 0x00ff00ff")
        if not args.noproto & 1:
            i("buffer_store_dwordx4 v[48:51], v65, s[48:51], s79 offen sc1", tag="yp")
        i("s_mov_b64 exec, -1")

    i("s_mov_b32 s48, s24")
    i("s_mov_b32 s49, s25")
    if args.yp_at == -2:
        ypoison()
    for n in range(4):
        issue()
    for q in range(4):
        i("s_lshr_b32 s4, s%d, %d" % (74 + q, 24 - QS))
        i("buffer_load_dwordx2 %s, v61, s[44:47], s4 offen" % vr(XD + 2 * q, 2), tag="x%d" % q)
    if args.yp_at == -1:
        ypoison()
    i("s_mov_b32 s56, s22")
    i("s_mov_b32 s57, s23")
    i("s_add_u32 s32, s12, s18")
    i("s_addc_u32 s33, s13, 0")
    i("s_add_u32 s40, s16, s26")
    i("s_addc_u32 s41, s17, 0")
    i("s_mov_b32 s52, s20")
    i("s_mov_b32 s53, s21")
    i("s_lshl_b32 s6, s2, 3")
    i("s_add_u32 s6, s6, s3")
    i("s_cmp_lg_u32 s6, %d" % args.leader)
    i("s_cbranch_scc1 L_nopoison")
    for r in range(4):
        i("v_mov_b32 v%d, -1" % (44 + r))
    i("v_lshlrev_b32 v48, 4, v1")
    i("s_mov_b32 s4, %d" % WS_ML)
    i("buffer_store_dwordx4 v[44:47], v48, s[48:51], s4 offen sc1")
    i("buffer_store_dwordx4 v[44:47], v48, s[48:51], s4 offen offset:1024 sc1")
    del e.vm[-2:]
    e.raw("L_nopoison:")
    pump(args.w0)
    i("v_and_b32 v60, 1, v2")
    i("v_lshlrev_b32 v60, 4, v60")
    i("v_mov_b32 v62, 0xffff")
    i("v_lshlrev_b32 v62, v60, v62")
    i("v_bfe_u32 v60, v0, 1, 2")
    for r in range(4):
        i("v_cmp_eq_u32 vcc, %d, v60" % r)
        i("v_cndmask_b32 v%d, 0, v62, vcc" % (MASK + r))
    i("s_mov_b32 s4, 0x0c0c0c0c")
    i("v_mov_b32 v60, 0x01000100")
    i("v_mov_b32 v62, 0x03020302")
    for r in range(4):
        i("v_bfi_b32 v%d, v%d, v60, s4" % (SEL + r, MASK + r))
        i("v_bfi_b32 v%d, v%d, v62, s4" % (SEL + 4 + r, MASK + r))

    def sel_a(k, src_dw):
        a = AB[k & 1]
        for r in range(4):
            i("v_perm_b32 v%d, v%d, v%d, v%d" % (a + r, src_dw + (k >> 1), src_dw + (k >> 1), SEL + 4 * (k & 1) + r))
        return a

    i("v_lshlrev_b32 v60, 5, v2")
    i("v_lshl_add_u32 v60, v3, 4, v60")
    i("s_mul_i32 s5, s3, %d" % PSTR)
    i("v_add_u32 v60, s5, v60")
    i("v_and_b32 v61, 3, v0")
    i("v_mul_u32_u24 v61, %d, v61" % (2 * PSTR))
    i("v_lshrrev_b32 v62, 2, v0")
    i("v_lshl_add_u32 v61, v62, 2, v61")
    i("v_lshlrev_b32 v62, 1, v62")

    e.wait_vm("x3")
    state["landed"] = 3
    pump()
    signalled = False

    def signal():
        i("s_cmp_lg_u32 s6, %d" % args.leader)
        i("s_cbranch_scc1 L_nosignal")
        i("v_mov_b32 v48, 1")
        i("v_mov_b32 v49, 0")
        i("s_mov_b64 exec, 1")
        i("buffer_store_dword v48, v49, s[56:59], 0 offen sc1")
        e.vm.pop()
        i("s_mov_b64 exec, -1")
        e.raw("L_nosignal:")

    def flagload():
        i("s_cmp_lg_u32 s3, %d" % CW)
        i("s_cbranch_scc1 L_noflag")
        if args.noproto & 4:
            i("v_mov_b32 v64, 1")
        else:
            i("v_mov_b32 v64, 0")
            i("buffer_load_dword v64, v64, s[56:59], 0 offen sc1")
            e.vm.pop()
        e.raw("L_noflag:")
        state["flag_pos"] = state["next"]

    for k in range(16):
        a = sel_a(k, XD)
        wait(("wq", k))
        if k == 4:
            signal()
        i("v_mfma_f32_16x16x32_bf16 %s, %s, %s, %s" % (vr(ACC), vr(a), vr(reg[("wq", k)]), "0" if k == 0 else vr(ACC)))
        release(("wq", k))
        pump()
        if k == args.yp_at:
            ypoison()
        if k == args.flag_at - 8 and not args.noproto & 2:
            flagload()
    pump(state["W"] + args.bq)
    state["W"] = args.w
    if args.yp_at == 16:
        ypoison()

    def reduce8(pbase, qbase, mid=None):
        i("v_add_u32 v63, %d, v61" % pbase)
        i("s_mov_b32 exec_hi, 0")
        i("ds_write_b128 v60, %s offset:%d" % (vr(ACC), pbase))
        i("s_mov_b32 exec_hi, -1")
        if mid:
            mid()
        i("s_waitcnt lgkmcnt(0)")
        i("s_barrier")
        i("ds_read2_b32 v[46:47], v63 offset0:0 offset1:%d" % (PSTR // 4))
        i("s_waitcnt lgkmcnt(0)")
        i("v_add_f32 v46, v46, v47")
        i("v_add_f32_dpp v46, v46, v46 quad_perm:[1,0,3,2] row_mask:0xf bank_mask:0xf")
        i("v_add_f32_dpp v46, v46, v46 quad_perm:[2,3,0,1] row_mask:0xf bank_mask:0xf")
        i("v_cvt_pk_bf16_f32 v46, v46, v46")
        i("ds_write_b16 v62, v46 offset:%d" % qbase)
        i("s_waitcnt lgkmcnt(0)")
        i("s_barrier")

    stamp(1)
    reduce8(L_QP, L_QB, mid=lambda: i("v_lshlrev_b32 v44, 4, v2"))
    i("ds_read_b128 %s, v44 offset:%d" % (vr(QD), L_QB))
    if args.catch:
        wait(seq[state["next"] - args.w])
    i("s_waitcnt lgkmcnt(0)")
    stamp(2)


    def merge(a):
        t = T[a & 1]
        i("v_add_f32_dpp v%d, v%d, v%d row_ror:8 row_mask:0xf bank_mask:0x3" % (t, t, t))
        i("v_add_f32_dpp v%d, v%d, v%d row_ror:8 row_mask:0xf bank_mask:0x3" % (t + 2, t + 2, t + 2))
        i("v_add_f32_dpp v%d, v%d, v%d row_ror:8 row_mask:0xf bank_mask:0xc" % (t, t + 1, t + 1))
        i("v_add_f32_dpp v%d, v%d, v%d row_ror:8 row_mask:0xf bank_mask:0xc" % (t + 2, t + 3, t + 3))
        s = S + a
        i("v_add_f32_dpp v%d, v%d, v%d row_half_mirror row_mask:0xf bank_mask:0x5" % (s, t, t))
        i("v_add_f32_dpp v%d, v%d, v%d row_half_mirror row_mask:0xf bank_mask:0xa" % (s, t + 2, t + 2))
        i("v_add_f32_dpp v%d, v%d, v%d quad_perm:[1,0,3,2] row_mask:0xf bank_mask:0xf" % (s, s, s))
        i("v_add_f32_dpp v%d, v%d, v%d quad_perm:[2,3,0,1] row_mask:0xf bank_mask:0xf" % (s, s, s))

    for a in range(8):
        t = T[a & 1]
        wait(("k", 4 * a + 3))
        for d in range(4):
            for q in range(4):
                kr = reg[("k", 4 * a + q)] + d
                i("v_dot2_f32_bf16 v%d, v%d, v%d, %s" % (t + q, kr, QD + d, "0" if d == 0 else "v%d" % (t + q)))
        for q in range(4):
            release(("k", 4 * a + q))
        pump()
        if a == args.flag_at and not args.noproto & 2:
            flagload()
        merge(a)
    pump(args.w + args.bk)
    stamp(3)

    i("s_mov_b32 s4, 0xffff0000")
    i("s_mov_b32 s5, 0x%x" % SCALE)
    i("s_mov_b32 s6, %s" % LOG2E)
    for a in range(8):
        i("v_cvt_pk_bf16_f32 v%d, v%d, v%d" % (S + a, S + a, S + a))
    for a in range(8):
        i("v_and_b32 v%d, s4, v%d" % (S + a, S + a))
    for a in range(8):
        i("v_mul_f32 v%d, s5, v%d" % (S + a, S + a))
    for a in range(8):
        i("v_cvt_pk_bf16_f32 v%d, v%d, v%d" % (S + a, S + a, S + a))
    for a in range(8):
        i("v_and_b32 v%d, s4, v%d" % (S + a, S + a))
    i("v_max3_f32 v44, v%d, v%d, v%d" % (S, S + 1, S + 2))
    i("v_max3_f32 v45, v%d, v%d, v%d" % (S + 3, S + 4, S + 5))
    i("v_max3_f32 v44, v44, v%d, v%d" % (S + 6, S + 7))
    i("v_max_f32 v44, v44, v45")

    def allred(op, r, t):
        i("%s_dpp v%d, v%d, v%d row_ror:4 row_mask:0xf bank_mask:0xf" % (op, r, r, r))
        i("%s_dpp v%d, v%d, v%d row_ror:8 row_mask:0xf bank_mask:0xf" % (op, r, r, r))
        i("v_mov_b32 v%d, v%d" % (t, r))
        i("v_permlane16_swap_b32 v%d, v%d" % (r, t))
        i("%s v%d, v%d, v%d" % (op, r, r, t))
        i("v_mov_b32 v%d, v%d" % (t, r))
        i("v_permlane32_swap_b32 v%d, v%d" % (r, t))
        i("%s v%d, v%d, v%d" % (op, r, r, t))

    allred("v_max_f32", 44, 45)
    for a in range(8):
        i("v_sub_f32 v%d, v%d, v44" % (S + a, S + a))
    for a in range(8):
        i("v_mul_f32 v%d, s6, v%d" % (S + a, S + a))
    for a in range(8):
        i("v_exp_f32 v%d, v%d" % (S + a, S + a))
    i("v_add_f32 v45, v%d, v%d" % (S, S + 1))
    i("v_add_f32 v46, v%d, v%d" % (S + 2, S + 3))
    i("v_add_f32 v47, v%d, v%d" % (S + 4, S + 5))
    i("v_add_f32 v48, v%d, v%d" % (S + 6, S + 7))
    i("v_add_f32 v45, v45, v46")
    i("v_add_f32 v47, v47, v48")
    i("v_add_f32 v45, v45, v47")
    allred("v_add_f32", 45, 46)
    i("s_lshl_b32 s5, s3, 3")
    i("v_mov_b32 v46, s5")
    i("ds_write_b64 v46, v[44:45] offset:%d" % L_ML)
    for a in range(8):
        i("v_cvt_pk_bf16_f32 v%d, v%d, v%d" % (S + a, S + a, S + a))
    bank = [0, 2, 1, 3]

    def pv(k):
        a = AB[k & 1]
        if args.prio:
            pts = [int(x) for x in args.prio.split(",")]
            if k == 0:
                i("s_setprio 3")
            if k in pts:
                i("s_setprio %d" % (2 - pts.index(k)))
        for r in range(4):
            i("v_and_b32_dpp v%d, v%d, v%d row_newbcast:%d row_mask:0xf bank_mask:0xf" % (
                a + r, S + (k >> 2), MASK + r, 4 * bank[k & 3]))
        wait(("v", k))
        i("v_mfma_f32_16x16x32_bf16 %s, %s, %s, %s" % (vr(ACC), vr(a), vr(reg[("v", k)]), "0" if k == 0 else vr(ACC)))
        release(("v", k))
        pump()

    for k in range(args.mlat):
        pv(k)
    pump(args.w + args.bk)
    i("v_and_b32 v46, 7, v0")
    i("v_lshlrev_b32 v46, 3, v46")
    i("s_waitcnt lgkmcnt(0)")
    assert "yp" not in e.vm
    i("s_barrier")
    i("ds_read_b64 v[46:47], v46 offset:%d" % L_ML)
    if args.catch:
        wait(seq[state["next"] - args.w])
    i("v_mov_b32 v50, 0")
    i("s_waitcnt lgkmcnt(0)")
    i("v_mov_b32 v48, v46")
    i("v_max_f32_dpp v48, v48, v48 quad_perm:[1,0,3,2] row_mask:0xf bank_mask:0xf")
    i("v_max_f32_dpp v48, v48, v48 quad_perm:[2,3,0,1] row_mask:0xf bank_mask:0xf")
    i("v_max_f32_dpp v48, v48, v48 row_half_mirror row_mask:0xf bank_mask:0xf")
    i("v_sub_f32 v46, v46, v48")
    i("v_sub_f32 v44, v44, v48")
    i("v_mul_f32 v46, s6, v46")
    i("v_mul_f32 v44, s6, v44")
    i("v_exp_f32 v46, v46")
    i("v_exp_f32 v44, v44")
    i("v_mul_f32 v49, v46, v47")
    i("v_add_f32_dpp v49, v49, v49 quad_perm:[1,0,3,2] row_mask:0xf bank_mask:0xf")
    i("v_add_f32_dpp v49, v49, v49 quad_perm:[2,3,0,1] row_mask:0xf bank_mask:0xf")
    i("v_add_f32_dpp v49, v49, v49 row_half_mirror row_mask:0xf bank_mask:0xf")
    i("s_cmp_lg_u32 s3, %d" % (77 if args.noproto & 2 else CW))
    i("s_cbranch_scc1 L_noml")
    if not args.noproto & 2:
        assert state["landed"] >= state["flag_pos"]
    i("s_mov_b32 s5, 0")
    e.label("L_flag")
    i("v_readfirstlane_b32 s4, v64")
    i("s_add_u32 s5, s5, 1")
    i("s_cmp_eq_u32 s4, 1")
    i("s_cbranch_scc1 L_flag_ok")
    i("s_cmp_ge_u32 s5, %d" % SPIN_MAX)
    i("s_cbranch_scc1 L_flag_ok")
    i("buffer_load_dword v64, v50, s[56:59], 0 offen sc1")
    e.vm.pop()
    i("s_waitcnt vmcnt(0)")
    i("s_branch L_flag")
    e.label("L_flag_ok")
    i("v_min_u32 v48, -2, v48")
    i("v_min_u32 v49, -2, v49")
    i("s_mov_b64 exec, 1")
    if not args.noproto & 8:
        i("buffer_store_dwordx2 v[48:49], v50, s[48:51], s80 offen sc1")
        e.vm.pop()
    i("s_mov_b64 exec, -1")
    e.raw("L_noml:")
    i("v_bfe_u32 v45, v0, 3, 1")
    i("v_lshlrev_b32 v45, 7, v45")
    i("v_lshl_add_u32 v45, v3, 5, v45")
    for q in range(4):
        i("v_add_u32 v%d, s%d, v45" % (QD + q, [82, 83, 100, 101][q]))
    i("s_lshl_b32 s6, s7, 9")
    i("s_add_u32 s6, s6, %d" % WS_ML)
    i("v_lshlrev_b32 v45, 3, v1")
    for k in range(args.mlat, 32):
        pv(k)
        if k == args.ml_at and not args.noproto & 18:
            i("s_cmp_lg_u32 s3, %d" % CW)
            i("s_cbranch_scc1 L_nomlpre")
            i("buffer_load_dwordx2 v[48:49], v45, s[48:51], s6 offen sc1")
            e.vm.pop()
            e.raw("L_nomlpre:")
    stamp(4)
    for r in range(4):
        i("v_mul_f32 v%d, v44, v%d" % (ACC + r, ACC + r))
    reduce8(L_OP, L_OB)
    for q in range(4):
        i("ds_read_b64 %s, v%d offset:%d" % (vr(XD + 2 * q, 2), QD + q, L_OB))
    i("s_waitcnt lgkmcnt(0)")
    stamp(5)
    ACC2 = 52
    for k in range(16):
        a = sel_a(k, XD)
        wait(("wo", k))
        acc = ACC if k & 1 == 0 or not args.acc2 else ACC2
        first = k == 0 or (k == 1 and args.acc2)
        i("v_mfma_f32_16x16x32_bf16 %s, %s, %s, %s" % (vr(acc), vr(a), vr(reg[("wo", k)]), "0" if first else vr(acc)))
        release(("wo", k))
        pump()
    if args.acc2:
        for r in range(4):
            i("v_add_f32 v%d, v%d, v%d" % (ACC + r, ACC + r, ACC2 + r))
    for r in range(4):
        i("v_permlane32_swap_b32 v%d, v%d" % (ACC + r, 56 + r))
    for r in range(4):
        i("v_add_f32_dpp v%d, v%d, v%d row_ror:8 row_mask:0xf bank_mask:0xf" % (ACC + r, 56 + r, ACC + r))
    for r in range(4):
        i("v_min_u32 v%d, -2, v%d" % (ACC + r, ACC + r))
    i("s_mov_b64 exec, 0x00ff00ff")
    i("buffer_store_dwordx4 %s, v65, s[48:51], s79 offen sc1" % vr(ACC))
    i("s_cmp_lg_u32 s3, %d" % CW)
    i("s_cbranch_scc1 L_end")

    e.vm = []
    stamp(6)
    i("s_mov_b64 exec, -1")
    i("s_mov_b32 s82, 0")
    i("s_lshl_b32 s5, s7, 17")
    i("s_lshl_b32 s4, s78, %d" % (11 if args.ytr else 5))
    i("s_add_u32 s5, s5, s4")
    i("v_lshlrev_b32 v16, %d, v1" % (5 if args.ytr else 11))
    i("s_waitcnt vmcnt(1)")
    if args.nopoll:
        i("s_branch L_y_ok")
    e.label("L_ml")
    i("v_max_u32 v18, v48, v49")
    i("v_cmp_eq_u32 vcc, -1, v18")
    i("s_add_u32 s82, s82, 1")
    i("s_nop 1")
    i("s_cbranch_vccz L_ml_ok")
    i("s_cmp_ge_u32 s82, %d" % SPIN_MAX)
    i("s_cbranch_scc1 L_ml_ok")
    i("buffer_load_dwordx2 v[48:49], v45, s[48:51], s6 offen sc1")
    i("s_waitcnt vmcnt(0)")
    i("s_branch L_ml")
    e.label("L_ml_ok")
    i("buffer_load_dwordx4 v[8:11], v16, s[48:51], s5 offen sc1")
    i("buffer_load_dwordx4 v[12:15], v16, s[48:51], s5 offen offset:16 sc1")
    i("s_lshl_b32 s17, s63, 11")
    i("s_lshl_b32 s18, s61, 10")
    i("s_add_u32 s17, s17, s18")
    i("s_lshl_b32 s18, s78, 4")
    i("s_add_u32 s17, s17, s18")
    i("v_bfe_u32 v3, v1, 4, 1")
    i("v_lshlrev_b32 v3, 1, v3")
    i("v_bfe_u32 v18, v1, 5, 1")
    i("v_add_u32 v3, v3, v18")
    i("v_bfe_u32 v18, v1, 3, 1")
    i("v_lshl_add_u32 v3, v18, 2, v3")
    i("v_lshlrev_b32 v3, 1, v3")
    i("v_max_f32_dpp v6, v48, v48 quad_perm:[1,0,3,2] row_mask:0xf bank_mask:0xf")
    i("v_sub_f32 v4, v48, v6")
    i("v_mul_f32 v4, %s, v4" % LOG2E)
    i("v_exp_f32 v4, v4")
    i("v_mul_f32 v5, v49, v4")
    i("v_add_f32_dpp v5, v5, v5 quad_perm:[1,0,3,2] row_mask:0xf bank_mask:0xf")
    i("v_rcp_f32 v5, v5")
    i("v_mul_f32 v4, v4, v5")
    P = args.polls
    e.label("L_y")
    i("s_waitcnt vmcnt(%d)" % 0)
    e.label("L_y2")
    i("v_max3_u32 v18, v8, v9, v10")
    i("v_max3_u32 v19, v11, v12, v13")
    i("v_max3_u32 v18, v18, v14, v15")
    i("v_max_u32 v18, v18, v19")
    i("v_cmp_eq_u32 vcc, -1, v18")
    i("s_add_u32 s82, s82, 1")
    i("s_nop 1")
    i("s_cbranch_vccz L_y_ok")
    i("s_cmp_ge_u32 s82, %d" % SPIN_MAX)
    i("s_cbranch_scc1 L_y_ok")
    i("s_mov_b64 exec, vcc")
    if args.sleep:
        i("s_sleep %d" % args.sleep)
    i("buffer_load_dwordx4 v[8:11], v16, s[48:51], s5 offen sc1")
    i("buffer_load_dwordx4 v[12:15], v16, s[48:51], s5 offen offset:16 sc1")
    if P > 1:
        i("s_bcnt1_i32_b64 s83, vcc")
        i("s_cmp_gt_u32 s83, %d" % args.few)
        i("s_cbranch_scc1 L_y")
        i("s_waitcnt vmcnt(%d)" % (2 * (P - 1)))
        i("s_branch L_y2")
    else:
        i("s_branch L_y")
    e.label("L_y_ok")
    i("s_mov_b64 exec, -1")
    for r in range(8):
        i("v_mul_f32 v%d, v4, v%d" % (24 + r, 8 + r))
    for r in range(0, 8, 2):
        i("v_permlane32_swap_b32 v%d, v%d" % (24 + r, 25 + r))
    for r in range(0, 8, 2):
        i("v_add_f32 v%d, v%d, v%d" % (24 + r, 24 + r, 25 + r))
    i("v_permlane16_swap_b32 v24, v26")
    i("v_permlane16_swap_b32 v28, v30")
    i("v_add_f32 v24, v24, v26")
    i("v_add_f32 v28, v28, v30")
    i("v_add_f32_dpp v24, v24, v24 row_ror:8 row_mask:0xf bank_mask:0x3")
    i("v_add_f32_dpp v24, v28, v28 row_ror:8 row_mask:0xf bank_mask:0xc")
    i("v_add_f32_dpp v24, v24, v24 row_half_mirror row_mask:0xf bank_mask:0xf")
    i("v_add_f32_dpp v24, v24, v24 quad_perm:[1,0,3,2] row_mask:0xf bank_mask:0xf")
    i("v_add_f32_dpp v24, v24, v24 quad_perm:[2,3,0,1] row_mask:0xf bank_mask:0xf")
    i("v_cvt_pk_bf16_f32 v24, v24, v24")
    i("s_mov_b32 exec_lo, 0x01010101")
    i("s_mov_b32 exec_hi, 0x01010101")
    i("buffer_store_short v24, v3, s[52:55], s17 offen")
    if args.stamps:
        stamp(7)
        i("s_waitcnt lgkmcnt(0)")
        i("s_mov_b64 exec, 1")
        for r in range(16):
            i("v_mov_b32 v%d, s%d" % (32 + r, 84 + r))
        i("s_getreg_b32 s72, hwreg(HW_REG_XCC_ID)")
        i("v_mov_b32 v35, s72")
        if args.xid:
            i("s_xor_b32 s2, s2, %d" % args.xid)
        i("s_lshl_b32 s73, s2, 6")
        i("s_add_u32 s73, s73, %d" % STAMP_OFF)
        for r in range(4):
            i("buffer_store_dwordx4 %s, v50, s[48:51], s73 offen offset:%d" % (vr(32 + 4 * r), 16 * r))
        if args.dbgspan:
            i("v_not_b32 v33, v32")
            i("buffer_atomic_umax v33, v50, s[56:59], 0 offen offset:4 sc1")
            for r in range(8):
                i("buffer_atomic_umax v%d, v50, s[56:59], 0 offen offset:%d sc1" % (32 + 2 * r, 8 + 4 * r))
    e.raw("L_end:")
    i("s_endpgm")

    out = HEADER
    out += "; @launch grid=(256,1,1) block=(512,1,1) lds=%d\n" % LDS_BYTES
    out += '.amdgcn_target "amdgcn-amd-amdhsa--gfx950"\n.text\n'
    out += e.text()
    out += '.section .rodata,"a"\n'
    nv = max(args.nv, (RB + 4 * args.depth + 7) // 8 * 8)
    for name, ns in ((KN, 102),):
        out += ".p2align 6\n.amdhsa_kernel %s\n" % name
        out += "  .amdhsa_next_free_vgpr %d\n  .amdhsa_next_free_sgpr %d\n  .amdhsa_accum_offset %d\n" % (nv, ns, nv)
        out += "  .amdhsa_group_segment_fixed_size 0\n  .amdhsa_kernarg_size 104\n"
        out += "  .amdhsa_user_sgpr_count 2\n  .amdhsa_user_sgpr_kernarg_segment_ptr 1\n"
        out += "  .amdhsa_system_sgpr_workgroup_id_x 1\n.end_amdhsa_kernel\n"
    return out


if __name__ == "__main__":
    ap = argparse.ArgumentParser()
    ap.add_argument("-o", default="cdna_kernels/%s.s" % NAME)
    ap.add_argument("--xid", type=int, default=0)
    ap.add_argument("--nopoll", type=int, default=0)
    ap.add_argument("--nt", type=int, default=1)
    ap.add_argument("--wnt", type=int, default=0)
    ap.add_argument("--wrot", type=int, default=1)
    ap.add_argument("--a", type=int, default=4)
    ap.add_argument("--wo1", type=int, default=2)
    ap.add_argument("--wo2", type=int, default=7)
    ap.add_argument("--wq_ratio", type=int, default=1)
    ap.add_argument("--wq_gate", type=int, default=3)
    ap.add_argument("--catch", type=int, default=1)
    ap.add_argument("--noproto", type=int, default=0)
    ap.add_argument("--skipw", type=int, default=0)
    ap.add_argument("--wq_k", type=int, default=2)
    ap.add_argument("--dbgspan", type=int, default=0)
    ap.add_argument("--wqw", type=int, default=0)
    ap.add_argument("--wflags", default="")
    ap.add_argument("--leader", type=int, default=1)
    ap.add_argument("--wqmap", default="15,17,19")
    ap.add_argument("--wo_v", type=int, default=2)
    ap.add_argument("--prio", default="")
    ap.add_argument("--w", type=int, default=6)
    ap.add_argument("--w0", type=int, default=8)
    ap.add_argument("--bq", type=int, default=4)
    ap.add_argument("--bk", type=int, default=2)
    ap.add_argument("--wo_ratio", type=int, default=1)
    ap.add_argument("--mlat", type=int, default=0)
    ap.add_argument("--acc2", type=int, default=0)
    ap.add_argument("--cw", type=int, default=0)
    ap.add_argument("--flag_at", type=int, default=20, help="0..7: K group; 8+k: after wq k")
    ap.add_argument("--yp_at", type=int, default=6)
    ap.add_argument("--ml_at", type=int, default=20)
    ap.add_argument("--depth", type=int, default=46)
    ap.add_argument("--nv", type=int, default=168)
    ap.add_argument("--ytr", type=int, default=0)
    ap.add_argument("--sleep", type=int, default=0)
    ap.add_argument("--polls", type=int, default=1)
    ap.add_argument("--few", type=int, default=4)
    ap.add_argument("--stamps", type=int, default=0)
    args = ap.parse_args()
    open(args.o, "w").write(gen(args))
```

```python
import sys, os, argparse
sys.path.insert(0, os.path.dirname(__file__))
from emit import Emitter

NAME = "concat_heads__sliding_block_cached__sliding_block_cached__decode"
HEADER = open("cdna_kernels/%s.s.ref" % NAME).read().split("; Override launch geometry")[0]

LOG2E = "0x3fb8aa3b"
SCALE = 0x3DB504F3

PSTR = 528
L_QP = 0
L_QB = 4352
L_ML = 4608
L_OP = 4864
L_OB = 9216
LDS_BYTES = 9472

WS_ML = 512 * 1024
STAMP_OFF = 8 << 20
SPIN_MAX = 1 << 16


def vr(b, n=4):
    return "v[%d:%d]" % (b, b + n - 1)


def gen(args):
    e = Emitter()
    i = e.i
    kvflag = " nt" if args.nt else ""
    wflag = " nt" if args.wnt else ""
    if args.wflags:
        wflag = " " + args.wflags.replace("+", " ")
    ownflag = " nt" if args.ownnt else wflag
    sfl = " nt" if args.snt else ""
    MASK, SEL, XD, QD = 8, 12, 20, 28
    AB = [32, 36]
    ACC = 40
    T = [44, 48]
    S = 52
    RB = 68
    KN = NAME + "_kernel"
    CW = args.cw

    def stamp(k):
        if args.stamps:
            i("s_memrealtime s[%d:%d]" % (84 + 2 * k, 85 + 2 * k))

    e.raw(".globl %s\n.p2align 8\n.type %s,@function\n%s:" % (KN, KN, KN))
    i("s_cmp_ge_u32 s2, 256")
    i("s_cbranch_scc1 L_end")
    stamp(0)
    if args.xid:
        i("s_xor_b32 s2, s2, %d" % args.xid)
    i("s_and_b32 s60, s2, 7")
    i("s_lshl_b32 s60, s60, 3")
    i("s_lshr_b32 s61, s2, 5")
    i("s_add_u32 s60, s60, s61")
    i("s_lshr_b32 s61, s60, 5")
    i("s_mul_i32 s62, s61, 40")
    i("s_add_u32 s4, s0, s62")
    i("s_addc_u32 s5, s1, 0")
    i("s_load_dwordx8 s[8:15], s[4:5], 0")
    i("s_load_dwordx2 s[16:17], s[4:5], 32")
    i("s_load_dwordx4 s[20:23], s[0:1], 80")
    i("s_load_dwordx2 s[24:25], s[0:1], 96")
    i("s_and_b32 s62, s60, 31")
    i("s_bfe_u32 s63, s2, 0x10004")
    i("s_bfe_u32 s64, s2, 0x10003")
    i("v_and_b32 v1, 63, v0")
    i("v_lshrrev_b32 v7, 6, v0")
    i("v_and_b32 v2, 15, v0")
    i("v_readfirstlane_b32 s3, v7")
    i("v_bfe_u32 v3, v0, 4, 2")
    i("s_lshr_b32 s65, s2, 3")
    for a in range(8):
        i("s_add_u32 s%d, s65, %d" % (66 + a, a))
        i("s_and_b32 s%d, s%d, 7" % (66 + a, 66 + a))
        i("s_lshl_b32 s%d, s%d, 15" % (66 + a, 66 + a))
    for q in range(4):
        if args.wrot:
            i("s_add_u32 s%d, s65, %d" % (74 + q, q))
            i("s_and_b32 s%d, s%d, 3" % (74 + q, 74 + q))
            i("s_lshl_b32 s%d, s%d, 12" % (74 + q, 74 + q))
        else:
            i("s_movk_i32 s%d, %d" % (74 + q, q << 12))
    i("v_lshlrev_b32 v4, 4, v1")
    i("v_lshl_add_u32 v4, v7, 12, v4")
    i("v_lshlrev_b32 v5, 4, v2")
    QS, GS, WS = [int(x) for x in args.wqmap.split(",")]
    i("v_lshl_add_u32 v5, v3, %d, v5" % GS)
    i("v_lshl_add_u32 v5, v7, %d, v5" % WS)
    i("v_and_b32 v6, 7, v0")
    i("v_lshlrev_b32 v6, 4, v6")
    i("v_lshl_add_u32 v6, v3, 14, v6")
    i("v_lshl_add_u32 v6, v7, 7, v6")
    i("v_bfe_u32 v60, v0, 3, 1")
    i("v_lshl_add_u32 v6, v60, 16, v6")
    i("v_lshlrev_b32 v61, %d, v3" % (GS - 12))
    i("v_lshl_add_u32 v61, v7, %d, v61" % (WS - 12))
    i("s_lshl_b32 s18, s63, 5")
    i("s_add_u32 s18, s18, s62")
    i("s_lshl_b32 s18, s18, 21")
    i("s_lshl_b32 s19, s64, 18")
    i("s_add_u32 s18, s18, s19")
    i("s_add_u32 s18, s18, 0x180000")
    i("s_lshl_b32 s19, s62, 8")
    i("s_lshl_b32 s26, s62, 17")
    i("s_lshl_b32 s27, s63, 10")
    i("s_mov_b32 s30, 0x40000")
    i("s_mov_b32 s31, 0x20000")
    i("s_mov_b32 s34, 0x40000")
    i("s_mov_b32 s35, 0x20000")
    i("s_sub_u32 s38, 0x400000, s19")
    i("s_mov_b32 s39, 0x20000")
    i("s_mov_b32 s42, 0x20000")
    i("s_mov_b32 s43, 0x20000")
    i("s_movk_i32 s46, 0x400")
    i("s_mov_b32 s47, 0x20000")
    i("s_mov_b32 s50, 0x1000000")
    i("s_mov_b32 s51, 0x20000")
    i("s_movk_i32 s54, 0x1000")
    i("s_mov_b32 s55, 0x20000")
    i("s_movk_i32 s58, 0x100")
    i("s_mov_b32 s59, 0x20000")
    i("s_lshl_b32 s7, s61, 1")
    i("s_add_u32 s7, s7, s63")
    i("s_lshl_b32 s78, s62, 1")
    i("s_add_u32 s78, s78, s64")
    i("s_lshl_b32 s79, s7, 17")
    i("s_lshl_b32 s80, s78, %d" % (5 if args.ytr else 11))
    i("s_add_u32 s79, s79, s80")
    i("s_lshl_b32 s80, s7, 6")
    i("s_add_u32 s80, s80, s78")
    i("s_lshl_b32 s80, s80, 3")
    i("s_add_u32 s80, s80, %d" % WS_ML)
    i("s_lshl_b32 s81, s74, %d" % (QS - 12))
    for q in range(4):
        i("s_lshr_b32 s%d, s%d, 9" % (82 + q if q < 2 else 98 + q, 74 + q))
    i("s_waitcnt lgkmcnt(0)")
    i("s_add_u32 s36, s14, s19")
    i("s_addc_u32 s37, s15, 0")
    i("s_add_u32 s44, s8, s27")
    i("s_addc_u32 s45, s9, 0")
    i("s_add_u32 s28, s10, s18")
    i("s_addc_u32 s29, s11, 0")

    kseq = [("k", k) for k in range(32)]
    vseq = [("v", k) for k in range(32)]
    wq = [("wq", k) for k in range(16)]
    wo = [("wo", k) for k in range(16)]
    A = args.a
    seq = wq[:4] + kseq[:A]
    rest = kseq[A:]
    other = wq[4:]
    while other:
        seq += other[:args.wq_ratio]
        other = other[args.wq_ratio:]
        if other:
            for _ in range(args.wq_k):
                seq.append(rest.pop(0))
    seq += rest
    vs = vseq[:args.wo1] + wo[:4] + vseq[args.wo1:args.wo2]
    rest = vseq[args.wo2:]
    early = wo[4:]
    while rest or early:
        for _ in range(args.wo_ratio):
            if early:
                vs.append(early.pop(0))
        for _ in range(args.wo_v):
            if rest:
                vs.append(rest.pop(0))
    seq += vs
    if args.seq:
        import re
        src = {"q": list(wq), "k": list(kseq), "v": list(vseq), "o": list(wo)}
        txt = re.sub(r"\(([^)]*)\)x(\d+)", lambda m: ",".join([m.group(1)] * int(m.group(2))), args.seq)
        seq = []
        for tok in txt.split(","):
            n = 99 if tok[1:] == "r" else int(tok[1:])
            seq += src[tok[0]][:n]
            src[tok[0]] = src[tok[0]][n:]
    assert len(seq) == 96 and len(set(seq)) == 96
    pos = {t: n for n, t in enumerate(seq)}

    def is_h(t):
        return t[0] in "kv" or (args.wh == 0 and t[1] < 4) or args.wh == 1 or (args.wh == 3 and t[1] % 4 == 0)

    gate = {("wq", 4): ("wq", args.wq_gate)} if args.wq_gate >= 0 else {}
    D = args.depth
    free = [RB + 4 * n for n in range(D)]
    reg = {}
    state = {"next": 0, "landed": -1, "W": args.wqw or args.w}

    def touch(kind):
        a, b, c, d = (13, GS, 7, WS) if kind == "wq" else (10, 14, 16, 7)
        i("v_and_b32 v66, 3, v0")
        i("v_lshlrev_b32 v66, %d, v66" % a)
        i("v_bfe_u32 v67, v0, 2, 2")
        i("v_lshl_add_u32 v66, v67, %d, v66" % b)
        i("v_bfe_u32 v67, v0, 4, 1")
        i("v_lshl_add_u32 v66, v67, %d, v66" % c)
        i("v_lshl_add_u32 v66, v7, %d, v66" % d)
        if kind == "wq":
            i("s_lshl_b32 s4, s74, %d" % (QS - 12))
            i("buffer_load_dword v67, v66, s[36:39], s4 offen %s" % args.tflags.replace("+", " "))
        else:
            i("buffer_load_dword v67, v66, s[40:43], s74 offen %s" % args.tflags.replace("+", " "))

    def issue():
        n = state["next"]
        if n >= len(seq) or not free:
            return False
        state["next"] = n + 1
        t = seq[n]
        kind, k = t
        reg[t] = free.pop(0)
        dst = vr(reg[t])
        if (kind == "wq" and k >= 4 and args.skipw & 1) or (kind == "wo" and k >= 4 and args.skipw & 2):
            pass
        elif kind == "wq":
            if k & 3 == 0 and k:
                i("s_lshl_b32 s81, s%d, %d" % (74 + (k >> 2), QS - 12))
            i("buffer_load_dwordx4 %s, v5, s[36:39], s81 offen%s" % (dst, ownflag if k < 4 else wflag), tag=t)
            if k & 3 != 3:
                i("s_add_u32 s81, s81, 0x2000")
            if k == 3 and args.touch == 1:
                touch("wq")
        elif kind in "kv":
            i("buffer_load_dwordx4 %s, v4, %s, s%d offen offset:%d%s" % (
                dst, "s[28:31]" if kind == "k" else "s[32:35]", 66 + (k >> 2), (k & 3) * 1024, kvflag), tag=t)
        else:
            i("buffer_load_dwordx4 %s, v6, s[40:43], s%d offen offset:%d%s" % (
                dst, 74 + (k >> 2), (k & 3) * 1024, ownflag if k < 4 else wflag), tag=t)
            if k == 3 and args.touch == 1:
                touch("wo")
        return True

    def pump(W=None):
        W = W or state["W"]
        while state["next"] < len(seq) and free:
            t = seq[state["next"]]
            if t in gate and pos[gate[t]] > state["landed"]:
                break
            if is_h(t) and sum(is_h(u) for u in seq[state["landed"] + 1:state["next"]]) >= W:
                break
            issue()

    def wait(t, W=None):
        while state["landed"] < pos[t]:
            nxt = state["landed"] + 1
            assert nxt < state["next"], ("stuck", t)
            lim = min(pos[t], state["next"] - 1)
            while nxt < lim and not is_h(seq[nxt]):
                nxt += 1
            if not free or state["next"] >= len(seq):
                nxt = lim
            e.wait_vm(seq[nxt])
            if args.touch == 2 and state["landed"] < pos[("wo", 3)] <= nxt:
                touch("wo")
            state["landed"] = nxt
            pump(W)

    def release(t):
        free.append(reg[t])

    def ypoison():
        i("v_and_b32 v65, 7, v0")
        i("v_lshl_add_u32 v65, v7, 3, v65")
        i("v_lshlrev_b32 v65, %d, v65" % (11 if args.ytr else 5))
        i("v_lshl_add_u32 v65, v3, 4, v65")
        for r in range(4):
            i("v_mov_b32 v%d, -1" % (48 + r))
        i("s_mov_b64 exec, 0x00ff00ff")
        if not args.noproto & 1:
            i("buffer_store_dwordx4 v[48:51], v65, s[48:51], s79 offen sc1" + sfl, tag="yp")
        i("s_mov_b64 exec, -1")

    i("s_mov_b32 s48, s24")
    i("s_mov_b32 s49, s25")
    if args.yp_at == -2:
        ypoison()
    for n in range(4):
        issue()
    for q in range(4):
        i("s_lshr_b32 s4, s%d, %d" % (74 + q, 24 - QS))
        i("buffer_load_dwordx2 %s, v61, s[44:47], s4 offen" % vr(XD + 2 * q, 2) + (" nt" if args.xnt else ""), tag="x%d" % q)
    if args.yp_at == -1:
        ypoison()
    i("s_mov_b32 s56, s22")
    i("s_mov_b32 s57, s23")
    i("s_add_u32 s32, s12, s18")
    i("s_addc_u32 s33, s13, 0")
    i("s_add_u32 s40, s16, s26")
    i("s_addc_u32 s41, s17, 0")
    i("s_mov_b32 s52, s20")
    i("s_mov_b32 s53, s21")
    i("s_lshl_b32 s6, s2, 3")
    i("s_add_u32 s6, s6, s3")
    i("s_cmp_lg_u32 s6, %d" % args.leader)
    i("s_cbranch_scc1 L_nopoison")
    for r in range(4):
        i("v_mov_b32 v%d, -1" % (44 + r))
    i("v_lshlrev_b32 v48, 4, v1")
    i("s_mov_b32 s4, %d" % WS_ML)
    i("buffer_store_dwordx4 v[44:47], v48, s[48:51], s4 offen sc1" + sfl)
    i("buffer_store_dwordx4 v[44:47], v48, s[48:51], s4 offen offset:1024 sc1" + sfl)
    del e.vm[-2:]
    e.raw("L_nopoison:")
    pump(args.w0)
    i("v_and_b32 v60, 1, v2")
    i("v_lshlrev_b32 v60, 4, v60")
    i("v_mov_b32 v62, 0xffff")
    i("v_lshlrev_b32 v62, v60, v62")
    i("v_bfe_u32 v60, v0, 1, 2")
    for r in range(4):
        i("v_cmp_eq_u32 vcc, %d, v60" % r)
        i("v_cndmask_b32 v%d, 0, v62, vcc" % (MASK + r))
    i("s_mov_b32 s4, 0x0c0c0c0c")
    i("v_mov_b32 v60, 0x01000100")
    i("v_mov_b32 v62, 0x03020302")
    for r in range(4):
        i("v_bfi_b32 v%d, v%d, v60, s4" % (SEL + r, MASK + r))
        i("v_bfi_b32 v%d, v%d, v62, s4" % (SEL + 4 + r, MASK + r))

    def sel_a(k, src_dw):
        a = AB[k & 1]
        for r in range(4):
            i("v_perm_b32 v%d, v%d, v%d, v%d" % (a + r, src_dw + (k >> 1), src_dw + (k >> 1), SEL + 4 * (k & 1) + r))
        return a

    i("v_lshlrev_b32 v60, 5, v2")
    i("v_lshl_add_u32 v60, v3, 4, v60")
    i("s_mul_i32 s5, s3, %d" % PSTR)
    i("v_add_u32 v60, s5, v60")
    i("v_and_b32 v61, 3, v0")
    i("v_mul_u32_u24 v61, %d, v61" % (2 * PSTR))
    i("v_lshrrev_b32 v62, 2, v0")
    i("v_lshl_add_u32 v61, v62, 2, v61")
    i("v_lshlrev_b32 v62, 1, v62")

    e.wait_vm("x3")
    if args.touch == 2:
        touch("wq")
    state["landed"] = 3
    pump()
    signalled = False

    def signal():
        i("s_cmp_lg_u32 s6, %d" % args.leader)
        i("s_cbranch_scc1 L_nosignal")
        i("v_mov_b32 v48, 1")
        i("v_mov_b32 v49, 0")
        i("s_mov_b64 exec, 1")
        i("buffer_store_dword v48, v49, s[56:59], 0 offen sc1" + sfl)
        e.vm.pop()
        i("s_mov_b64 exec, -1")
        e.raw("L_nosignal:")

    def flagload():
        i("s_cmp_lg_u32 s3, %d" % CW)
        i("s_cbranch_scc1 L_noflag")
        if args.noproto & 4:
            i("v_mov_b32 v64, 1")
        else:
            i("v_mov_b32 v64, 0")
            i("buffer_load_dword v64, v64, s[56:59], 0 offen sc1" + sfl)
            e.vm.pop()
        e.raw("L_noflag:")
        state["flag_pos"] = state["next"]

    for k in range(16):
        a = sel_a(k, XD)
        wait(("wq", k))
        if k == 4:
            signal()
        i("v_mfma_f32_16x16x32_bf16 %s, %s, %s, %s" % (vr(ACC), vr(a), vr(reg[("wq", k)]), "0" if k == 0 else vr(ACC)))
        release(("wq", k))
        pump()
        if k == args.yp_at:
            ypoison()
        if k == args.flag_at - 8 and not args.noproto & 2:
            flagload()
    pump(state["W"] + args.bq)
    state["W"] = args.w
    if args.yp_at == 16:
        ypoison()

    def reduce8(pbase, qbase, mid=None):
        i("v_add_u32 v63, %d, v61" % pbase)
        i("s_mov_b32 exec_hi, 0")
        i("ds_write_b128 v60, %s offset:%d" % (vr(ACC), pbase))
        i("s_mov_b32 exec_hi, -1")
        if mid:
            mid()
        i("s_waitcnt lgkmcnt(0)")
        i("s_barrier")
        i("ds_read2_b32 v[46:47], v63 offset0:0 offset1:%d" % (PSTR // 4))
        i("s_waitcnt lgkmcnt(0)")
        i("v_add_f32 v46, v46, v47")
        i("v_add_f32_dpp v46, v46, v46 quad_perm:[1,0,3,2] row_mask:0xf bank_mask:0xf")
        i("v_add_f32_dpp v46, v46, v46 quad_perm:[2,3,0,1] row_mask:0xf bank_mask:0xf")
        i("v_cvt_pk_bf16_f32 v46, v46, v46")
        i("ds_write_b16 v62, v46 offset:%d" % qbase)
        i("s_waitcnt lgkmcnt(0)")
        i("s_barrier")

    stamp(1)
    reduce8(L_QP, L_QB, mid=lambda: i("v_lshlrev_b32 v44, 4, v2"))
    i("ds_read_b128 %s, v44 offset:%d" % (vr(QD), L_QB))
    if args.catch:
        wait(seq[state["next"] - args.w])
    i("s_waitcnt lgkmcnt(0)")
    stamp(2)


    def merge(a):
        t = T[a & 1]
        i("v_add_f32_dpp v%d, v%d, v%d row_ror:8 row_mask:0xf bank_mask:0x3" % (t, t, t))
        i("v_add_f32_dpp v%d, v%d, v%d row_ror:8 row_mask:0xf bank_mask:0x3" % (t + 2, t + 2, t + 2))
        i("v_add_f32_dpp v%d, v%d, v%d row_ror:8 row_mask:0xf bank_mask:0xc" % (t, t + 1, t + 1))
        i("v_add_f32_dpp v%d, v%d, v%d row_ror:8 row_mask:0xf bank_mask:0xc" % (t + 2, t + 3, t + 3))
        s = S + a
        i("v_add_f32_dpp v%d, v%d, v%d row_half_mirror row_mask:0xf bank_mask:0x5" % (s, t, t))
        i("v_add_f32_dpp v%d, v%d, v%d row_half_mirror row_mask:0xf bank_mask:0xa" % (s, t + 2, t + 2))
        i("v_add_f32_dpp v%d, v%d, v%d quad_perm:[1,0,3,2] row_mask:0xf bank_mask:0xf" % (s, s, s))
        i("v_add_f32_dpp v%d, v%d, v%d quad_perm:[2,3,0,1] row_mask:0xf bank_mask:0xf" % (s, s, s))

    for a in range(8):
        t = T[a & 1]
        wait(("k", 4 * a + 3))
        for d in range(4):
            for q in range(4):
                kr = reg[("k", 4 * a + q)] + d
                i("v_dot2_f32_bf16 v%d, v%d, v%d, %s" % (t + q, kr, QD + d, "0" if d == 0 else "v%d" % (t + q)))
        for q in range(4):
            release(("k", 4 * a + q))
        pump()
        if a == args.flag_at and not args.noproto & 2:
            flagload()
        merge(a)
    pump(args.w + args.bk)
    stamp(3)

    i("s_mov_b32 s4, 0xffff0000")
    i("s_mov_b32 s5, 0x%x" % SCALE)
    i("s_mov_b32 s6, %s" % LOG2E)
    for a in range(8):
        i("v_cvt_pk_bf16_f32 v%d, v%d, v%d" % (S + a, S + a, S + a))
    for a in range(8):
        i("v_and_b32 v%d, s4, v%d" % (S + a, S + a))
    for a in range(8):
        i("v_mul_f32 v%d, s5, v%d" % (S + a, S + a))
    for a in range(8):
        i("v_cvt_pk_bf16_f32 v%d, v%d, v%d" % (S + a, S + a, S + a))
    for a in range(8):
        i("v_and_b32 v%d, s4, v%d" % (S + a, S + a))
    i("v_max3_f32 v44, v%d, v%d, v%d" % (S, S + 1, S + 2))
    i("v_max3_f32 v45, v%d, v%d, v%d" % (S + 3, S + 4, S + 5))
    i("v_max3_f32 v44, v44, v%d, v%d" % (S + 6, S + 7))
    i("v_max_f32 v44, v44, v45")

    def allred(op, r, t):
        i("%s_dpp v%d, v%d, v%d row_ror:4 row_mask:0xf bank_mask:0xf" % (op, r, r, r))
        i("%s_dpp v%d, v%d, v%d row_ror:8 row_mask:0xf bank_mask:0xf" % (op, r, r, r))
        i("v_mov_b32 v%d, v%d" % (t, r))
        i("v_permlane16_swap_b32 v%d, v%d" % (r, t))
        i("%s v%d, v%d, v%d" % (op, r, r, t))
        i("v_mov_b32 v%d, v%d" % (t, r))
        i("v_permlane32_swap_b32 v%d, v%d" % (r, t))
        i("%s v%d, v%d, v%d" % (op, r, r, t))

    allred("v_max_f32", 44, 45)
    for a in range(8):
        i("v_sub_f32 v%d, v%d, v44" % (S + a, S + a))
    for a in range(8):
        i("v_mul_f32 v%d, s6, v%d" % (S + a, S + a))
    for a in range(8):
        i("v_exp_f32 v%d, v%d" % (S + a, S + a))
    i("v_add_f32 v45, v%d, v%d" % (S, S + 1))
    i("v_add_f32 v46, v%d, v%d" % (S + 2, S + 3))
    i("v_add_f32 v47, v%d, v%d" % (S + 4, S + 5))
    i("v_add_f32 v48, v%d, v%d" % (S + 6, S + 7))
    i("v_add_f32 v45, v45, v46")
    i("v_add_f32 v47, v47, v48")
    i("v_add_f32 v45, v45, v47")
    allred("v_add_f32", 45, 46)
    i("s_lshl_b32 s5, s3, 3")
    i("v_mov_b32 v46, s5")
    i("ds_write_b64 v46, v[44:45] offset:%d" % L_ML)
    for a in range(8):
        i("v_cvt_pk_bf16_f32 v%d, v%d, v%d" % (S + a, S + a, S + a))
    bank = [0, 2, 1, 3]

    def pv(k):
        a = AB[k & 1]
        if args.prio:
            pts = [int(x) for x in args.prio.split(",")]
            if k == 0:
                i("s_setprio 3")
            if k in pts:
                i("s_setprio %d" % (2 - pts.index(k)))
        for r in range(4):
            i("v_and_b32_dpp v%d, v%d, v%d row_newbcast:%d row_mask:0xf bank_mask:0xf" % (
                a + r, S + (k >> 2), MASK + r, 4 * bank[k & 3]))
        wait(("v", k))
        i("v_mfma_f32_16x16x32_bf16 %s, %s, %s, %s" % (vr(ACC), vr(a), vr(reg[("v", k)]), "0" if k == 0 else vr(ACC)))
        release(("v", k))
        pump()

    for k in range(args.mlat):
        pv(k)
    pump(args.w + args.bk)
    i("v_and_b32 v46, 7, v0")
    i("v_lshlrev_b32 v46, 3, v46")
    i("s_waitcnt lgkmcnt(0)")
    assert "yp" not in e.vm
    i("s_barrier")
    i("ds_read_b64 v[46:47], v46 offset:%d" % L_ML)
    if args.catch:
        wait(seq[state["next"] - args.w])
    i("v_mov_b32 v50, 0")
    i("s_waitcnt lgkmcnt(0)")
    i("v_mov_b32 v48, v46")
    i("v_max_f32_dpp v48, v48, v48 quad_perm:[1,0,3,2] row_mask:0xf bank_mask:0xf")
    i("v_max_f32_dpp v48, v48, v48 quad_perm:[2,3,0,1] row_mask:0xf bank_mask:0xf")
    i("v_max_f32_dpp v48, v48, v48 row_half_mirror row_mask:0xf bank_mask:0xf")
    i("v_sub_f32 v46, v46, v48")
    i("v_sub_f32 v44, v44, v48")
    i("v_mul_f32 v46, s6, v46")
    i("v_mul_f32 v44, s6, v44")
    i("v_exp_f32 v46, v46")
    i("v_exp_f32 v44, v44")
    i("v_mul_f32 v49, v46, v47")
    i("v_add_f32_dpp v49, v49, v49 quad_perm:[1,0,3,2] row_mask:0xf bank_mask:0xf")
    i("v_add_f32_dpp v49, v49, v49 quad_perm:[2,3,0,1] row_mask:0xf bank_mask:0xf")
    i("v_add_f32_dpp v49, v49, v49 row_half_mirror row_mask:0xf bank_mask:0xf")
    i("s_cmp_lg_u32 s3, %d" % (77 if args.noproto & 2 else CW))
    i("s_cbranch_scc1 L_noml")
    if not args.noproto & 2:
        assert state["landed"] >= state["flag_pos"]
    i("s_mov_b32 s5, 0")
    e.label("L_flag")
    i("v_readfirstlane_b32 s4, v64")
    i("s_add_u32 s5, s5, 1")
    i("s_cmp_eq_u32 s4, 1")
    i("s_cbranch_scc1 L_flag_ok")
    i("s_cmp_ge_u32 s5, %d" % SPIN_MAX)
    i("s_cbranch_scc1 L_flag_ok")
    i("buffer_load_dword v64, v50, s[56:59], 0 offen sc1" + sfl)
    e.vm.pop()
    i("s_waitcnt vmcnt(0)")
    i("s_branch L_flag")
    e.label("L_flag_ok")
    i("v_min_u32 v48, -2, v48")
    i("v_min_u32 v49, -2, v49")
    i("s_mov_b64 exec, 1")
    if not args.noproto & 8:
        i("buffer_store_dwordx2 v[48:49], v50, s[48:51], s80 offen sc1" + sfl)
        e.vm.pop()
    i("s_mov_b64 exec, -1")
    e.raw("L_noml:")
    i("v_bfe_u32 v45, v0, 3, 1")
    i("v_lshlrev_b32 v45, 7, v45")
    i("v_lshl_add_u32 v45, v3, 5, v45")
    for q in range(4):
        i("v_add_u32 v%d, s%d, v45" % (QD + q, [82, 83, 100, 101][q]))
    i("s_lshl_b32 s6, s7, 9")
    i("s_add_u32 s6, s6, %d" % WS_ML)
    i("v_lshlrev_b32 v45, 3, v1")
    for k in range(args.mlat, 32):
        pv(k)
        if k == args.ml_at and not args.noproto & 18:
            i("s_cmp_lg_u32 s3, %d" % CW)
            i("s_cbranch_scc1 L_nomlpre")
            i("buffer_load_dwordx2 v[48:49], v45, s[48:51], s6 offen sc1" + sfl)
            e.vm.pop()
            e.raw("L_nomlpre:")
    stamp(4)
    for r in range(4):
        i("v_mul_f32 v%d, v44, v%d" % (ACC + r, ACC + r))
    reduce8(L_OP, L_OB)
    for q in range(4):
        i("ds_read_b64 %s, v%d offset:%d" % (vr(XD + 2 * q, 2), QD + q, L_OB))
    i("s_waitcnt lgkmcnt(0)")
    stamp(5)
    ACC2 = 52
    for k in range(16):
        a = sel_a(k, XD)
        wait(("wo", k))
        acc = ACC if k & 1 == 0 or not args.acc2 else ACC2
        first = k == 0 or (k == 1 and args.acc2)
        i("v_mfma_f32_16x16x32_bf16 %s, %s, %s, %s" % (vr(acc), vr(a), vr(reg[("wo", k)]), "0" if first else vr(acc)))
        release(("wo", k))
        pump()
    if args.acc2:
        for r in range(4):
            i("v_add_f32 v%d, v%d, v%d" % (ACC + r, ACC + r, ACC2 + r))
    for r in range(4):
        i("v_permlane32_swap_b32 v%d, v%d" % (ACC + r, 56 + r))
    for r in range(4):
        i("v_add_f32_dpp v%d, v%d, v%d row_ror:8 row_mask:0xf bank_mask:0xf" % (ACC + r, 56 + r, ACC + r))
    for r in range(4):
        i("v_min_u32 v%d, -2, v%d" % (ACC + r, ACC + r))
    i("s_mov_b64 exec, 0x00ff00ff")
    i("buffer_store_dwordx4 %s, v65, s[48:51], s79 offen sc1" % vr(ACC) + sfl)
    i("s_cmp_lg_u32 s3, %d" % CW)
    i("s_cbranch_scc1 L_end")

    e.vm = []
    stamp(6)
    i("s_mov_b64 exec, -1")
    i("s_mov_b32 s82, 0")
    i("s_lshl_b32 s5, s7, 17")
    i("s_lshl_b32 s4, s78, %d" % (11 if args.ytr else 5))
    i("s_add_u32 s5, s5, s4")
    i("v_lshlrev_b32 v16, %d, v1" % (5 if args.ytr else 11))
    i("s_waitcnt vmcnt(1)")
    if args.nopoll:
        i("s_branch L_y_ok")
    e.label("L_ml")
    i("v_max_u32 v18, v48, v49")
    i("v_cmp_eq_u32 vcc, -1, v18")
    i("s_add_u32 s82, s82, 1")
    i("s_nop 1")
    i("s_cbranch_vccz L_ml_ok")
    i("s_cmp_ge_u32 s82, %d" % SPIN_MAX)
    i("s_cbranch_scc1 L_ml_ok")
    i("buffer_load_dwordx2 v[48:49], v45, s[48:51], s6 offen sc1" + sfl)
    i("s_waitcnt vmcnt(0)")
    i("s_branch L_ml")
    e.label("L_ml_ok")
    i("buffer_load_dwordx4 v[8:11], v16, s[48:51], s5 offen sc1" + sfl)
    i("buffer_load_dwordx4 v[12:15], v16, s[48:51], s5 offen offset:16 sc1" + sfl)
    i("s_lshl_b32 s17, s63, 11")
    i("s_lshl_b32 s18, s61, 10")
    i("s_add_u32 s17, s17, s18")
    i("s_lshl_b32 s18, s78, 4")
    i("s_add_u32 s17, s17, s18")
    i("v_bfe_u32 v3, v1, 4, 1")
    i("v_lshlrev_b32 v3, 1, v3")
    i("v_bfe_u32 v18, v1, 5, 1")
    i("v_add_u32 v3, v3, v18")
    i("v_bfe_u32 v18, v1, 3, 1")
    i("v_lshl_add_u32 v3, v18, 2, v3")
    i("v_lshlrev_b32 v3, 1, v3")
    i("v_max_f32_dpp v6, v48, v48 quad_perm:[1,0,3,2] row_mask:0xf bank_mask:0xf")
    i("v_sub_f32 v4, v48, v6")
    i("v_mul_f32 v4, %s, v4" % LOG2E)
    i("v_exp_f32 v4, v4")
    i("v_mul_f32 v5, v49, v4")
    i("v_add_f32_dpp v5, v5, v5 quad_perm:[1,0,3,2] row_mask:0xf bank_mask:0xf")
    i("v_rcp_f32 v5, v5")
    i("v_mul_f32 v4, v4, v5")
    P = args.polls
    e.label("L_y")
    i("s_waitcnt vmcnt(%d)" % 0)
    e.label("L_y2")
    i("v_max3_u32 v18, v8, v9, v10")
    i("v_max3_u32 v19, v11, v12, v13")
    i("v_max3_u32 v18, v18, v14, v15")
    i("v_max_u32 v18, v18, v19")
    i("v_cmp_eq_u32 vcc, -1, v18")
    i("s_add_u32 s82, s82, 1")
    i("s_nop 1")
    i("s_cbranch_vccz L_y_ok")
    i("s_cmp_ge_u32 s82, %d" % SPIN_MAX)
    i("s_cbranch_scc1 L_y_ok")
    i("s_mov_b64 exec, vcc")
    if args.sleep:
        i("s_sleep %d" % args.sleep)
    i("buffer_load_dwordx4 v[8:11], v16, s[48:51], s5 offen sc1" + sfl)
    i("buffer_load_dwordx4 v[12:15], v16, s[48:51], s5 offen offset:16 sc1" + sfl)
    if P > 1:
        i("s_bcnt1_i32_b64 s83, vcc")
        i("s_cmp_gt_u32 s83, %d" % args.few)
        i("s_cbranch_scc1 L_y")
        i("s_waitcnt vmcnt(%d)" % (2 * (P - 1)))
        i("s_branch L_y2")
    else:
        i("s_branch L_y")
    e.label("L_y_ok")
    i("s_mov_b64 exec, -1")
    for r in range(8):
        i("v_mul_f32 v%d, v4, v%d" % (24 + r, 8 + r))
    for r in range(0, 8, 2):
        i("v_permlane32_swap_b32 v%d, v%d" % (24 + r, 25 + r))
    for r in range(0, 8, 2):
        i("v_add_f32 v%d, v%d, v%d" % (24 + r, 24 + r, 25 + r))
    i("v_permlane16_swap_b32 v24, v26")
    i("v_permlane16_swap_b32 v28, v30")
    i("v_add_f32 v24, v24, v26")
    i("v_add_f32 v28, v28, v30")
    i("v_add_f32_dpp v24, v24, v24 row_ror:8 row_mask:0xf bank_mask:0x3")
    i("v_add_f32_dpp v24, v28, v28 row_ror:8 row_mask:0xf bank_mask:0xc")
    i("v_add_f32_dpp v24, v24, v24 row_half_mirror row_mask:0xf bank_mask:0xf")
    i("v_add_f32_dpp v24, v24, v24 quad_perm:[1,0,3,2] row_mask:0xf bank_mask:0xf")
    i("v_add_f32_dpp v24, v24, v24 quad_perm:[2,3,0,1] row_mask:0xf bank_mask:0xf")
    i("v_cvt_pk_bf16_f32 v24, v24, v24")
    i("s_mov_b32 exec_lo, 0x01010101")
    i("s_mov_b32 exec_hi, 0x01010101")
    i("buffer_store_short v24, v3, s[52:55], s17 offen")
    if args.stamps:
        stamp(7)
        i("s_waitcnt lgkmcnt(0)")
        i("s_mov_b64 exec, 1")
        for r in range(16):
            i("v_mov_b32 v%d, s%d" % (32 + r, 84 + r))
        i("s_getreg_b32 s72, hwreg(HW_REG_XCC_ID)")
        i("v_mov_b32 v35, s72")
        if args.xid:
            i("s_xor_b32 s2, s2, %d" % args.xid)
        i("s_lshl_b32 s73, s2, 6")
        i("s_add_u32 s73, s73, %d" % STAMP_OFF)
        for r in range(4):
            i("buffer_store_dwordx4 %s, v50, s[48:51], s73 offen offset:%d" % (vr(32 + 4 * r), 16 * r))
        if args.dbgspan:
            i("v_not_b32 v33, v32")
            i("buffer_atomic_umax v33, v50, s[56:59], 0 offen offset:4 sc1")
            for r in range(8):
                i("buffer_atomic_umax v%d, v50, s[56:59], 0 offen offset:%d sc1" % (32 + 2 * r, 8 + 4 * r))
    e.raw("L_end:")
    i("s_endpgm")

    out = HEADER
    out += "; @launch grid=(256,1,1) block=(512,1,1) lds=%d\n" % LDS_BYTES
    out += '.amdgcn_target "amdgcn-amd-amdhsa--gfx950"\n.text\n'
    out += e.text()
    out += '.section .rodata,"a"\n'
    nv = max(args.nv, (RB + 4 * args.depth + 7) // 8 * 8)
    for name, ns in ((KN, 102),):
        out += ".p2align 6\n.amdhsa_kernel %s\n" % name
        out += "  .amdhsa_next_free_vgpr %d\n  .amdhsa_next_free_sgpr %d\n  .amdhsa_accum_offset %d\n" % (nv, ns, nv)
        out += "  .amdhsa_group_segment_fixed_size 0\n  .amdhsa_kernarg_size 104\n"
        out += "  .amdhsa_user_sgpr_count 2\n  .amdhsa_user_sgpr_kernarg_segment_ptr 1\n"
        out += "  .amdhsa_system_sgpr_workgroup_id_x 1\n.end_amdhsa_kernel\n"
    return out


if __name__ == "__main__":
    ap = argparse.ArgumentParser()
    ap.add_argument("-o", default="cdna_kernels/%s.s" % NAME)
    ap.add_argument("--xid", type=int, default=0)
    ap.add_argument("--nopoll", type=int, default=0)
    ap.add_argument("--nt", type=int, default=1)
    ap.add_argument("--wnt", type=int, default=0)
    ap.add_argument("--wrot", type=int, default=1)
    ap.add_argument("--a", type=int, default=4)
    ap.add_argument("--wo1", type=int, default=2)
    ap.add_argument("--wo2", type=int, default=7)
    ap.add_argument("--wq_ratio", type=int, default=1)
    ap.add_argument("--wq_gate", type=int, default=3)
    ap.add_argument("--catch", type=int, default=1)
    ap.add_argument("--noproto", type=int, default=0)
    ap.add_argument("--skipw", type=int, default=0)
    ap.add_argument("--wq_k", type=int, default=2)
    ap.add_argument("--ownnt", type=int, default=0)
    ap.add_argument("--seq", default="")
    ap.add_argument("--wh", type=int, default=0)
    ap.add_argument("--snt", type=int, default=0)
    ap.add_argument("--xnt", type=int, default=0)
    ap.add_argument("--touch", type=int, default=0)
    ap.add_argument("--tflags", default="sc1")
    ap.add_argument("--dbgspan", type=int, default=0)
    ap.add_argument("--wqw", type=int, default=0)
    ap.add_argument("--wflags", default="")
    ap.add_argument("--leader", type=int, default=1)
    ap.add_argument("--wqmap", default="15,17,19")
    ap.add_argument("--wo_v", type=int, default=2)
    ap.add_argument("--prio", default="")
    ap.add_argument("--w", type=int, default=6)
    ap.add_argument("--w0", type=int, default=8)
    ap.add_argument("--bq", type=int, default=4)
    ap.add_argument("--bk", type=int, default=2)
    ap.add_argument("--wo_ratio", type=int, default=1)
    ap.add_argument("--mlat", type=int, default=0)
    ap.add_argument("--acc2", type=int, default=0)
    ap.add_argument("--cw", type=int, default=0)
    ap.add_argument("--flag_at", type=int, default=20, help="0..7: K group; 8+k: after wq k")
    ap.add_argument("--yp_at", type=int, default=-1)
    ap.add_argument("--ml_at", type=int, default=20)
    ap.add_argument("--depth", type=int, default=46)
    ap.add_argument("--nv", type=int, default=168)
    ap.add_argument("--ytr", type=int, default=0)
    ap.add_argument("--sleep", type=int, default=0)
    ap.add_argument("--polls", type=int, default=1)
    ap.add_argument("--few", type=int, default=4)
    ap.add_argument("--stamps", type=int, default=0)
    args = ap.parse_args()
    open(args.o, "w").write(gen(args))
```

```python
import sys, os, argparse, re
sys.path.insert(0, os.path.dirname(__file__))
from emit import Emitter

NAME = "concat_heads__sliding_block_cached__sliding_block_cached__decode"
HEADER = open("cdna_kernels/%s.s.ref" % NAME).read().split("; Override launch geometry")[0]

LOG2E = "0x3fb8aa3b"
SCALE = 0x3DB504F3

PSTR = 528
L_QP = 0
L_QB = 4352
L_ML = 4608
L_OP = 4864
OSTR = 288
L_WO = 8192
LDS_BYTES = L_WO + 131072

WS_ML = 512 * 1024
STAMP_OFF = 8 << 20
SPIN_MAX = 1 << 16


def vr(b, n=4):
    return "v[%d:%d]" % (b, b + n - 1)


def gen(args):
    e = Emitter()
    i = e.i
    MASK, SEL, XD, QD = 8, 12, 20, 28
    AB = [32, 36]
    ACC = 40
    T = [44, 48]
    S = 52
    RB = 68
    KN = NAME + "_kernel"
    CW = 0
    QS, GS, WS = 15, 17, 19

    def stamp(k):
        if args.stamps == 2 and k in (1, 2, 3, 4, 5):
            return
        if args.stamps and (k > 5 or k == 0 or bool(args.early) == bool(state.get("early", 1))):
            i("s_memrealtime s[%d:%d]" % (84 + 2 * k, 85 + 2 * k))

    state = {}
    src = {"q": [("wq", k) for k in range(16)], "k": [("k", k) for k in range(32)],
           "v": [("v", k) for k in range(32)], "o": [("wo", k) for k in range(16)]}
    txt = re.sub(r"\(([^)]*)\)x(\d+)", lambda m: ",".join([m.group(1)] * int(m.group(2))), args.seq)
    seq = []
    bars = set()
    for tok in txt.split(","):
        if tok == "B":
            bars.add(len(seq))
            continue
        n = 99 if tok[1:] == "r" else int(tok[1:])
        seq += src[tok[0]][:n]
        src[tok[0]] = src[tok[0]][n:]
    assert len(seq) == 96 and len(set(seq)) == len(seq)
    pos = {t: n for n, t in enumerate(seq)}

    def is_h(t):
        return t[0] in "kv" or (t[0] == "wq" and t[1] < 4) or (t[0] == "wo" and t[1] < 4 and args.woh)

    gate = {("wq", 4): ("wq", 3)} if args.wq_gate else {}
    D = args.depth
    free = [RB + 4 * n for n in range(D)]
    reg = {}
    state.update({"next": 0, "landed": -1, "W": args.wqw or args.w})

    def issue():
        n = state["next"]
        t = seq[n]
        kind, k = t
        state["next"] = n + 1
        if n in bars:
            i("s_barrier")
        if kind == "wo":
            if k & 3 == 0:
                i("s_add_u32 m0, s19, s%d" % (74 + (k >> 2)))
                i("s_lshl_b32 s81, s%d, 3" % (74 + (k >> 2)))
            else:
                i("s_add_u32 s81, s81, 7168")
            i("buffer_load_dwordx4 v6, s[40:43], s81 offen offset:%d lds" % ((k & 3) * 1024), tag=t)
            return
        reg[t] = free.pop(0)
        dst = vr(reg[t])
        if kind == "wq":
            if k & 3 == 0:
                i("s_lshl_b32 s81, s%d, %d" % (74 + (k >> 2), QS - 12))
            else:
                i("s_add_u32 s81, s81, 0x2000")
            i("buffer_load_dwordx4 %s, v5, s[36:39], s81 offen" % dst, tag=t)
        else:
            i("buffer_load_dwordx4 %s, v4, %s, s%d offen offset:%d nt" % (
                dst, "s[28:31]" if kind == "k" else "s[32:35]", 66 + (k >> 2), (k & 3) * 1024), tag=t)

    def pump(W=None, upto=None):
        W = W or state["W"]
        while state["next"] < len(seq) and free and (upto is None or state["next"] < upto):
            t = seq[state["next"]]
            if t in gate and pos[gate[t]] > state["landed"]:
                break
            if is_h(t) and sum(is_h(u) for u in seq[state["landed"] + 1:state["next"]]) >= W:
                break
            issue()

    def wait(t, W=None):
        while state["landed"] < pos[t]:
            nxt = state["landed"] + 1
            assert nxt < state["next"], ("stuck", t)
            lim = min(pos[t], state["next"] - 1)
            while nxt < lim and not is_h(seq[nxt]):
                nxt += 1
            if not free or state["next"] >= len(seq):
                nxt = lim
            e.wait_vm(seq[nxt])
            state["landed"] = nxt
            pump(W)

    def release(t):
        free.append(reg[t])

    e.raw(".globl %s\n.p2align 8\n.type %s,@function\n%s:" % (KN, KN, KN))
    i("s_cmp_ge_u32 s2, 256")
    i("s_cbranch_scc1 L_end")
    i("s_bfe_u32 s61, s2, 0x10002")
    i("s_mul_i32 s26, s61, 40")
    i("s_load_dwordx8 s[8:15], s[0:1], s26")
    i("s_load_dwordx2 s[16:17], s[0:1], s26 offset:32")
    i("s_load_dwordx4 s[20:23], s[0:1], 80")
    i("s_load_dwordx2 s[24:25], s[0:1], 96")
    stamp(0)
    i("s_and_b32 s62, s2, 3")
    i("s_lshl_b32 s62, s62, 3")
    i("s_lshr_b32 s60, s2, 5")
    i("s_add_u32 s62, s62, s60")
    i("s_bfe_u32 s63, s2, 0x10004")
    i("s_bfe_u32 s64, s2, 0x10003")
    i("v_lshrrev_b32 v7, 6, v0")
    i("v_lshlrev_b32 v4, 4, v0")
    i("s_movk_i32 s4, 3072")
    i("v_mad_u32_u24 v4, v7, s4, v4")
    i("s_lshl_b32 s18, s63, 5")
    i("s_add_u32 s18, s18, s62")
    i("s_lshl_b32 s18, s18, 3")
    i("s_add_u32 s18, s18, s64")
    i("s_add_u32 s18, s18, 6")
    i("s_lshl_b32 s18, s18, 18")
    i("s_mov_b32 s30, 0x40000")
    i("s_mov_b32 s31, 0x20000")
    i("s_lshr_b32 s65, s2, 3")
    i("s_and_b32 s66, s65, 7")
    i("s_lshl_b32 s66, s66, 15")
    i("v_and_b32 v2, 15, v0")
    i("v_bfe_u32 v3, v0, 4, 2")
    i("v_lshlrev_b32 v5, 4, v2")
    i("v_lshl_add_u32 v5, v3, %d, v5" % GS)
    i("v_lshl_add_u32 v5, v7, %d, v5" % WS)
    i("s_lshl_b32 s19, s62, 8")
    i("s_sub_u32 s38, 0x400000, s19")
    i("s_mov_b32 s39, 0x20000")
    i("s_and_b32 s74, s65, 3")
    i("s_lshl_b32 s74, s74, 12")
    i("s_waitcnt lgkmcnt(0)")
    stamp(1)
    first = seq[0][0]
    for kind in (["k", "wq"] if first == "k" else ["wq", "k"]):
        if kind == "k":
            i("s_add_u32 s28, s10, s18")
            i("s_addc_u32 s29, s11, 0")
        else:
            i("s_add_u32 s36, s14, s19")
            i("s_addc_u32 s37, s15, 0")
        while seq[state["next"]][0] == first and kind == first and seq[state["next"]][1] < 4:
            issue()
    while seq[state["next"]][1] < 4 and seq[state["next"]][0] in ("k", "wq") and state["next"] < args.w0:
        issue()
    stamp(2)
    for a in range(1, 8):
        i("s_add_u32 s%d, s%d, 0x8000" % (66 + a, 65 + a))
        i("s_and_b32 s%d, s%d, 0x38000" % (66 + a, 66 + a))
    for q in range(1, 4):
        i("s_add_u32 s%d, s%d, 0x1000" % (74 + q, 73 + q))
        i("s_and_b32 s%d, s%d, 0x3000" % (74 + q, 74 + q))
    i("v_lshlrev_b32 v61, %d, v3" % (GS - 12))
    i("v_lshl_add_u32 v61, v7, %d, v61" % (WS - 12))
    i("s_lshl_b32 s27, s63, 10")
    i("s_add_u32 s44, s8, s27")
    i("s_addc_u32 s45, s9, 0")
    i("s_movk_i32 s46, 0x400")
    i("s_mov_b32 s47, 0x20000")
    for q in range(4):
        i("s_lshr_b32 s4, s%d, %d" % (74 + q, 24 - QS))
        i("buffer_load_dwordx2 %s, v61, s[44:47], s4 offen" % vr(XD + 2 * q, 2), tag="x%d" % q)
    xpos = state["next"] - 1
    i("v_readfirstlane_b32 s3, v7")
    i("v_and_b32 v1, 63, v0")
    i("s_mov_b32 s48, s24")
    i("s_mov_b32 s49, s25")
    i("s_mov_b32 s50, 0x1000000")
    i("s_mov_b32 s51, 0x20000")
    i("s_lshl_b32 s7, s61, 1")
    i("s_add_u32 s7, s7, s63")
    i("s_lshl_b32 s78, s62, 1")
    i("s_add_u32 s78, s78, s64")
    i("s_lshl_b32 s80, s7, 6")
    i("s_add_u32 s80, s80, s78")
    i("s_lshl_b32 s79, s80, 11")
    i("s_lshl_b32 s80, s80, 3")
    i("s_add_u32 s80, s80, %d" % WS_ML)
    i("v_lshlrev_b32 v65, 2, v0")
    for r in range(4):
        i("v_mov_b32 v%d, -1" % (44 + r))
    if args.yp4:
        i("v_lshlrev_b32 v48, 4, v2")
        i("v_lshl_add_u32 v48, v7, 8, v48")
        i("s_mov_b64 exec, 0xffff")
        i("buffer_store_dwordx4 v[44:47], v48, s[48:51], s79 offen sc1", tag="yp")
        i("s_mov_b64 exec, -1")
    else:
        i("buffer_store_dword v44, v65, s[48:51], s79 offen sc1", tag="yp")
    i("s_lshl_b32 s6, s2, 3")
    i("s_add_u32 s6, s6, s3")
    i("s_cmp_lg_u32 s6, %d" % args.leader)
    i("s_cbranch_scc1 L_nopoison")
    i("v_lshlrev_b32 v48, 4, v1")
    i("s_mov_b32 s4, %d" % WS_ML)
    i("buffer_store_dwordx4 v[44:47], v48, s[48:51], s4 offen sc1")
    i("buffer_store_dwordx4 v[44:47], v48, s[48:51], s4 offen offset:1024 sc1")
    del e.vm[-2:]
    e.raw("L_nopoison:")
    poison_pos = state["next"]
    i("s_add_u32 s32, s12, s18")
    i("s_addc_u32 s33, s13, 0")
    i("s_mov_b32 s34, 0x40000")
    i("s_mov_b32 s35, 0x20000")
    i("s_lshl_b32 s26, s62, 17")
    i("s_add_u32 s40, s16, s26")
    i("s_addc_u32 s41, s17, 0")
    i("s_mov_b32 s42, 0x20000")
    i("s_mov_b32 s43, 0x20000")
    i("v_bfe_u32 v60, v0, 4, 2")
    i("v_lshlrev_b32 v60, 1, v60")
    i("v_and_b32 v6, 7, v0")
    i("v_xor_b32 v6, v6, v60")
    i("v_lshlrev_b32 v6, 4, v6")
    i("v_bfe_u32 v60, v0, 3, 3")
    i("v_lshl_add_u32 v6, v60, 10, v6")
    i("v_lshl_add_u32 v6, v7, 7, v6")
    i("s_lshl_b32 s19, s3, 14")
    i("s_add_u32 s19, s19, %d" % L_WO)
    pump(args.w0)
    i("s_mov_b32 s52, s20")
    i("s_mov_b32 s53, s21")
    i("s_movk_i32 s54, 0x1000")
    i("s_mov_b32 s55, 0x20000")
    i("s_mov_b32 s56, s22")
    i("s_mov_b32 s57, s23")
    i("s_movk_i32 s58, 0x100")
    i("s_mov_b32 s59, 0x20000")
    i("v_and_b32 v60, 1, v2")
    i("v_lshlrev_b32 v60, 4, v60")
    i("v_mov_b32 v62, 0xffff")
    i("v_lshlrev_b32 v62, v60, v62")
    i("v_bfe_u32 v60, v0, 1, 2")
    for r in range(4):
        i("v_cmp_eq_u32 vcc, %d, v60" % r)
        i("v_cndmask_b32 v%d, 0, v62, vcc" % (MASK + r))
    i("s_mov_b32 s4, 0x0c0c0c0c")
    i("v_mov_b32 v60, 0x01000100")
    i("v_mov_b32 v62, 0x03020302")
    for r in range(4):
        i("v_bfi_b32 v%d, v%d, v60, s4" % (SEL + r, MASK + r))
        i("v_bfi_b32 v%d, v%d, v62, s4" % (SEL + 4 + r, MASK + r))

    def sel_a(k, src_dw):
        a = AB[k & 1]
        for r in range(4):
            i("v_perm_b32 v%d, v%d, v%d, v%d" % (a + r, src_dw + (k >> 1), src_dw + (k >> 1), SEL + 4 * (k & 1) + r))
        return a

    i("v_lshlrev_b32 v60, 5, v2")
    i("v_lshl_add_u32 v60, v3, 4, v60")
    i("s_mul_i32 s5, s3, %d" % PSTR)
    i("v_add_u32 v60, s5, v60")
    i("v_and_b32 v61, 3, v0")
    i("v_mul_u32_u24 v61, %d, v61" % (2 * PSTR))
    i("v_lshrrev_b32 v62, 2, v0")
    i("v_lshl_add_u32 v61, v62, 2, v61")
    i("v_lshlrev_b32 v62, 1, v62")

    if args.early:
        stamp(3)
        e.wait_vm(seq[0])
        stamp(4)
    if args.xpace:
        wait(seq[xpos])
    e.wait_vm("x3")
    stamp(5)
    state["early"] = 0
    state["landed"] = max(state["landed"], xpos)
    pump()

    def signal():
        assert state["landed"] >= poison_pos
        i("s_cmp_lg_u32 s6, %d" % args.leader)
        i("s_cbranch_scc1 L_nosignal")
        i("v_mov_b32 v48, 1")
        i("v_mov_b32 v49, 0")
        i("s_mov_b64 exec, 1")
        i("buffer_store_dword v48, v49, s[56:59], 0 offen sc1")
        e.vm.pop()
        i("s_mov_b64 exec, -1")
        e.raw("L_nosignal:")

    def flagload():
        i("s_cmp_lg_u32 s3, %d" % CW)
        i("s_cbranch_scc1 L_noflag")
        i("v_mov_b32 v64, 0")
        i("buffer_load_dword v64, v64, s[56:59], 0 offen sc1")
        e.vm.pop()
        e.raw("L_noflag:")
        state["flag_pos"] = state["next"]

    for k in range(16):
        a = sel_a(k, XD)
        wait(("wq", k))
        if k == 4:
            signal()
        i("v_mfma_f32_16x16x32_bf16 %s, %s, %s, %s" % (vr(ACC), vr(a), vr(reg[("wq", k)]), "0" if k == 0 else vr(ACC)))
        release(("wq", k))
        pump()
        if k == args.flag_at:
            flagload()
    pump(state["W"] + args.bq)
    state["W"] = args.w

    stamp(1)
    i("s_mov_b32 exec_hi, 0")
    i("ds_write_b128 v60, %s offset:%d" % (vr(ACC), L_QP))
    i("s_mov_b32 exec_hi, -1")
    i("v_lshlrev_b32 v44, 4, v2")
    i("s_waitcnt lgkmcnt(0)")
    i("s_barrier")
    i("ds_read2_b32 v[46:47], v61 offset0:0 offset1:%d" % (PSTR // 4))
    i("s_waitcnt lgkmcnt(0)")
    i("v_add_f32 v46, v46, v47")
    i("v_add_f32_dpp v46, v46, v46 quad_perm:[1,0,3,2] row_mask:0xf bank_mask:0xf")
    i("v_add_f32_dpp v46, v46, v46 quad_perm:[2,3,0,1] row_mask:0xf bank_mask:0xf")
    i("v_cvt_pk_bf16_f32 v46, v46, v46")
    i("ds_write_b16 v62, v46 offset:%d" % L_QB)
    i("s_waitcnt lgkmcnt(0)")
    i("s_barrier")
    i("ds_read_b128 %s, v44 offset:%d" % (vr(QD), L_QB))
    wait(seq[state["next"] - args.w])
    i("s_waitcnt lgkmcnt(0)")
    stamp(2)


    def merge(a):
        t = T[a & 1]
        i("v_add_f32_dpp v%d, v%d, v%d row_ror:8 row_mask:0xf bank_mask:0x3" % (t, t, t))
        i("v_add_f32_dpp v%d, v%d, v%d row_ror:8 row_mask:0xf bank_mask:0x3" % (t + 2, t + 2, t + 2))
        i("v_add_f32_dpp v%d, v%d, v%d row_ror:8 row_mask:0xf bank_mask:0xc" % (t, t + 1, t + 1))
        i("v_add_f32_dpp v%d, v%d, v%d row_ror:8 row_mask:0xf bank_mask:0xc" % (t + 2, t + 3, t + 3))
        s = S + a
        i("v_add_f32_dpp v%d, v%d, v%d row_half_mirror row_mask:0xf bank_mask:0x5" % (s, t, t))
        i("v_add_f32_dpp v%d, v%d, v%d row_half_mirror row_mask:0xf bank_mask:0xa" % (s, t + 2, t + 2))
        i("v_add_f32_dpp v%d, v%d, v%d quad_perm:[1,0,3,2] row_mask:0xf bank_mask:0xf" % (s, s, s))
        i("v_add_f32_dpp v%d, v%d, v%d quad_perm:[2,3,0,1] row_mask:0xf bank_mask:0xf" % (s, s, s))

    for a in range(8):
        t = T[a & 1]
        wait(("k", 4 * a + 3))
        for d in range(4):
            for q in range(4):
                kr = reg[("k", 4 * a + q)] + d
                i("v_dot2_f32_bf16 v%d, v%d, v%d, %s" % (t + q, kr, QD + d, "0" if d == 0 else "v%d" % (t + q)))
        for q in range(4):
            release(("k", 4 * a + q))
        pump()
        merge(a)
    pump(args.w + args.bk)
    stamp(3)

    i("s_mov_b32 s4, 0xffff0000")
    i("s_mov_b32 s5, 0x%x" % SCALE)
    i("s_mov_b32 s6, %s" % LOG2E)
    for a in range(8):
        i("v_cvt_pk_bf16_f32 v%d, v%d, v%d" % (S + a, S + a, S + a))
    for a in range(8):
        i("v_and_b32 v%d, s4, v%d" % (S + a, S + a))
    for a in range(8):
        i("v_mul_f32 v%d, s5, v%d" % (S + a, S + a))
    for a in range(8):
        i("v_cvt_pk_bf16_f32 v%d, v%d, v%d" % (S + a, S + a, S + a))
    for a in range(8):
        i("v_and_b32 v%d, s4, v%d" % (S + a, S + a))
    i("v_max3_f32 v44, v%d, v%d, v%d" % (S, S + 1, S + 2))
    i("v_max3_f32 v45, v%d, v%d, v%d" % (S + 3, S + 4, S + 5))
    i("v_max3_f32 v44, v44, v%d, v%d" % (S + 6, S + 7))
    i("v_max_f32 v44, v44, v45")

    def allred(op, r, t):
        i("%s_dpp v%d, v%d, v%d row_ror:4 row_mask:0xf bank_mask:0xf" % (op, r, r, r))
        i("%s_dpp v%d, v%d, v%d row_ror:8 row_mask:0xf bank_mask:0xf" % (op, r, r, r))
        i("v_mov_b32 v%d, v%d" % (t, r))
        i("v_permlane16_swap_b32 v%d, v%d" % (r, t))
        i("%s v%d, v%d, v%d" % (op, r, r, t))
        i("v_mov_b32 v%d, v%d" % (t, r))
        i("v_permlane32_swap_b32 v%d, v%d" % (r, t))
        i("%s v%d, v%d, v%d" % (op, r, r, t))

    allred("v_max_f32", 44, 45)
    for a in range(8):
        i("v_sub_f32 v%d, v%d, v44" % (S + a, S + a))
    for a in range(8):
        i("v_mul_f32 v%d, s6, v%d" % (S + a, S + a))
    for a in range(8):
        i("v_exp_f32 v%d, v%d" % (S + a, S + a))
    i("v_add_f32 v45, v%d, v%d" % (S, S + 1))
    i("v_add_f32 v46, v%d, v%d" % (S + 2, S + 3))
    i("v_add_f32 v47, v%d, v%d" % (S + 4, S + 5))
    i("v_add_f32 v48, v%d, v%d" % (S + 6, S + 7))
    i("v_add_f32 v45, v45, v46")
    i("v_add_f32 v47, v47, v48")
    i("v_add_f32 v45, v45, v47")
    allred("v_add_f32", 45, 46)
    i("s_lshl_b32 s5, s3, 3")
    i("v_mov_b32 v46, s5")
    i("ds_write_b64 v46, v[44:45] offset:%d" % L_ML)
    i("v_bfe_u32 v13, v0, 2, 3")
    i("v_lshlrev_b32 v12, 7, v13")
    i("v_lshrrev_b32 v13, 1, v13")
    i("v_lshl_add_u32 v12, v13, 5, v12")
    i("v_and_b32 v13, 3, v0")
    i("v_lshl_add_u32 v12, v13, 3, v12")
    i("v_bfe_u32 v13, v0, 5, 1")
    i("v_lshl_add_u32 v12, v13, 11, v12")
    i("v_add_u32 v12, s19, v12")
    for nt in range(1, 4):
        i("v_xor_b32 v%d, %d, v12" % (12 + nt, nt << 5))
    i("v_lshrrev_b32 v16, 1, v2")
    i("v_lshlrev_b32 v16, 5, v16")
    i("v_bfe_u32 v17, v0, 4, 1")
    i("v_lshl_add_u32 v16, v17, 4, v16")
    i("v_and_b32 v17, 1, v0")
    i("v_lshl_add_u32 v16, v17, 3, v16")
    i("s_mul_i32 s5, s3, %d" % OSTR)
    i("v_add_u32 v16, s5, v16")
    i("v_and_b32 v46, 7, v0")
    i("v_mul_u32_u24 v17, %d, v46" % OSTR)
    i("v_lshl_add_u32 v17, v3, 4, v17")
    i("v_lshlrev_b32 v46, 3, v46")
    bank = [0, 2, 1, 3]
    bfrag = {}

    def trread(kt):
        assert state["landed"] >= pos[("wo", 15)]
        for nt in range(4):
            b = free.pop()
            bfrag[(kt, nt)] = b
            for j in range(2):
                i("ds_read_b64_tr_b16 %s, v%d offset:%d" % (vr(b + 2 * j, 2), 12 + nt, kt * 4096 + j * 1024))

    def pv(k):
        a = AB[k & 1]
        for r in range(4):
            i("v_and_b32_dpp v%d, v%d, v%d row_newbcast:%d row_mask:0xf bank_mask:0xf" % (
                a + r, S + (k >> 2), MASK + r, 4 * bank[k & 3]))
        wait(("v", k))
        i("v_mfma_f32_16x16x32_bf16 %s, %s, %s, %s" % (vr(ACC), vr(a), vr(reg[("v", k)]), "0" if k == 0 else vr(ACC)))
        release(("v", k))
        pump()
        if state["landed"] >= pos[("wo", 15)] and len(bfrag) < 16:
            trread(len(bfrag) // 4)

    i("s_waitcnt lgkmcnt(0)")
    assert "yp" not in e.vm
    i("s_barrier")
    i("ds_read_b64 v[46:47], v46 offset:%d" % L_ML)
    wait(seq[state["next"] - args.w])
    i("v_mov_b32 v50, 0")
    i("s_waitcnt lgkmcnt(0)")
    i("v_mov_b32 v48, v46")
    i("v_max_f32_dpp v48, v48, v48 quad_perm:[1,0,3,2] row_mask:0xf bank_mask:0xf")
    i("v_max_f32_dpp v48, v48, v48 quad_perm:[2,3,0,1] row_mask:0xf bank_mask:0xf")
    i("v_max_f32_dpp v48, v48, v48 row_half_mirror row_mask:0xf bank_mask:0xf")
    i("v_sub_f32 v46, v46, v48")
    i("v_sub_f32 v44, v44, v48")
    i("v_mul_f32 v46, s6, v46")
    i("v_mul_f32 v44, s6, v44")
    i("v_exp_f32 v46, v46")
    i("v_exp_f32 v44, v44")
    i("v_mul_f32 v49, v46, v47")
    for a in range(8):
        i("v_mul_f32 v%d, v44, v%d" % (S + a, S + a))
    for a in range(8):
        i("v_cvt_pk_bf16_f32 v%d, v%d, v%d" % (S + a, S + a, S + a))
    i("s_cmp_lg_u32 s3, %d" % CW)
    i("s_cbranch_scc1 L_noml")
    i("v_add_f32_dpp v49, v49, v49 quad_perm:[1,0,3,2] row_mask:0xf bank_mask:0xf")
    i("v_add_f32_dpp v49, v49, v49 quad_perm:[2,3,0,1] row_mask:0xf bank_mask:0xf")
    i("v_add_f32_dpp v49, v49, v49 row_half_mirror row_mask:0xf bank_mask:0xf")
    assert state["landed"] >= state["flag_pos"]
    i("s_mov_b32 s5, 0")
    e.label("L_flag")
    i("v_readfirstlane_b32 s4, v64")
    i("s_add_u32 s5, s5, 1")
    i("s_cmp_eq_u32 s4, 1")
    i("s_cbranch_scc1 L_flag_ok")
    i("s_cmp_ge_u32 s5, %d" % SPIN_MAX)
    i("s_cbranch_scc1 L_flag_ok")
    i("buffer_load_dword v64, v50, s[56:59], 0 offen sc1")
    e.vm.pop()
    i("s_waitcnt vmcnt(0)")
    i("s_branch L_flag")
    e.label("L_flag_ok")
    i("v_min_u32 v48, -2, v48")
    i("v_min_u32 v49, -2, v49")
    i("s_mov_b64 exec, 1")
    i("buffer_store_dwordx2 v[48:49], v50, s[48:51], s80 offen sc1")
    e.vm.pop()
    i("s_mov_b64 exec, -1")
    e.raw("L_noml:")
    i("s_lshl_b32 s6, s7, 9")
    i("s_add_u32 s6, s6, %d" % WS_ML)
    i("v_lshlrev_b32 v45, 3, v1")
    for k in range(32):
        pv(k)
        if k == args.ml_at:
            i("s_cmp_lg_u32 s3, %d" % CW)
            i("s_cbranch_scc1 L_nomlpre")
            i("buffer_load_dwordx2 v[48:49], v45, s[48:51], s6 offen sc1")
            e.vm.pop()
            e.raw("L_nomlpre:")
    assert len(bfrag) == 16
    stamp(4)
    i("v_cvt_pk_bf16_f32 v%d, v%d, v%d" % (ACC, ACC, ACC + 1))
    i("v_cvt_pk_bf16_f32 v%d, v%d, v%d" % (ACC + 1, ACC + 2, ACC + 3))
    i("ds_write_b64 v16, %s offset:%d" % (vr(ACC, 2), L_OP))
    i("s_waitcnt lgkmcnt(0)")
    i("s_barrier")
    AF = [52, 56, 60, 8]
    YD = 24
    for kt in range(4):
        i("ds_read_b128 %s, v17 offset:%d" % (vr(AF[kt]), L_OP + kt * 64))
    stamp(5)
    for kt in range(4):
        i("s_waitcnt lgkmcnt(%d)" % (0 if args.stamps == 1 else 3 - kt))
        for nt in range(4):
            d = vr(YD + 4 * nt)
            i("v_mfma_f32_16x16x32_bf16 %s, %s, %s, %s" % (d, vr(AF[kt]), vr(bfrag[(kt, nt)]), "0" if kt == 0 else d))
    for nt in range(4):
        d = YD + 4 * nt
        i("v_pk_add_f32 %s, %s, %s" % (vr(d, 2), vr(d, 2), vr(d + 2, 2)))
    for nt in range(4):
        d = YD + 4 * nt
        i("v_add_f32 v%d, v%d, v%d" % (d, d, d + 1))
    i("v_permlane16_swap_b32 v%d, v%d" % (YD, YD + 4))
    i("v_permlane16_swap_b32 v%d, v%d" % (YD + 8, YD + 12))
    i("v_add_f32 v%d, v%d, v%d" % (YD, YD, YD + 4))
    i("v_add_f32_dpp v%d, v%d, v%d quad_perm:[0,1,2,3] row_mask:0xc bank_mask:0xf" % (YD, YD + 8, YD + 12))
    i("v_min_u32 v%d, -2, v%d" % (YD, YD))
    i("buffer_store_dword v%d, v65, s[48:51], s79 offen sc1" % YD)
    i("s_cmp_lg_u32 s3, %d" % CW)
    i("s_cbranch_scc1 L_end")

    e.vm = []
    stamp(6)
    i("s_mov_b32 s82, 0")
    i("s_lshl_b32 s5, s7, 17")
    i("s_lshl_b32 s4, s78, 5")
    i("s_add_u32 s5, s5, s4")
    i("v_lshlrev_b32 v16, 11, v1")
    i("s_waitcnt vmcnt(1)")
    if args.nopoll:
        i("s_branch L_y_ok")
    e.label("L_ml")
    i("v_max_u32 v18, v48, v49")
    i("v_cmp_eq_u32 vcc, -1, v18")
    i("s_add_u32 s82, s82, 1")
    i("s_nop 1")
    i("s_cbranch_vccz L_ml_ok")
    i("s_cmp_ge_u32 s82, %d" % SPIN_MAX)
    i("s_cbranch_scc1 L_ml_ok")
    i("buffer_load_dwordx2 v[48:49], v45, s[48:51], s6 offen sc1")
    i("s_waitcnt vmcnt(0)")
    i("s_branch L_ml")
    e.label("L_ml_ok")
    i("buffer_load_dwordx4 v[8:11], v16, s[48:51], s5 offen sc1")
    i("buffer_load_dwordx4 v[12:15], v16, s[48:51], s5 offen offset:16 sc1")
    i("s_lshl_b32 s17, s63, 11")
    i("s_lshl_b32 s18, s61, 10")
    i("s_add_u32 s17, s17, s18")
    i("s_lshl_b32 s18, s78, 4")
    i("s_add_u32 s17, s17, s18")
    i("v_bfe_u32 v3, v1, 4, 1")
    i("v_lshlrev_b32 v3, 1, v3")
    i("v_bfe_u32 v18, v1, 5, 1")
    i("v_add_u32 v3, v3, v18")
    i("v_bfe_u32 v18, v1, 3, 1")
    i("v_lshl_add_u32 v3, v18, 2, v3")
    i("v_lshlrev_b32 v3, 1, v3")
    i("v_max_f32_dpp v6, v48, v48 quad_perm:[1,0,3,2] row_mask:0xf bank_mask:0xf")
    i("v_sub_f32 v4, v48, v6")
    i("v_mul_f32 v4, %s, v4" % LOG2E)
    i("v_exp_f32 v4, v4")
    i("v_mul_f32 v5, v49, v4")
    i("v_add_f32_dpp v5, v5, v5 quad_perm:[1,0,3,2] row_mask:0xf bank_mask:0xf")
    i("v_rcp_f32 v5, v5")
    i("v_mul_f32 v4, v4, v5")
    P = args.polls
    e.label("L_y")
    i("s_waitcnt vmcnt(%d)" % 0)
    e.label("L_y2")
    i("v_max3_u32 v18, v8, v9, v10")
    i("v_max3_u32 v19, v11, v12, v13")
    i("v_max3_u32 v18, v18, v14, v15")
    i("v_max_u32 v18, v18, v19")
    i("v_cmp_eq_u32 vcc, -1, v18")
    i("s_add_u32 s82, s82, 1")
    i("s_nop 1")
    i("s_cbranch_vccz L_y_ok")
    i("s_cmp_ge_u32 s82, %d" % SPIN_MAX)
    i("s_cbranch_scc1 L_y_ok")
    i("s_mov_b64 exec, vcc")
    i("buffer_load_dwordx4 v[8:11], v16, s[48:51], s5 offen sc1")
    i("buffer_load_dwordx4 v[12:15], v16, s[48:51], s5 offen offset:16 sc1")
    if P > 1:
        i("s_bcnt1_i32_b64 s83, vcc")
        i("s_cmp_gt_u32 s83, %d" % args.few)
        i("s_cbranch_scc1 L_y")
        i("s_waitcnt vmcnt(%d)" % (2 * (P - 1)))
        i("s_branch L_y2")
    else:
        i("s_branch L_y")
    e.label("L_y_ok")
    i("s_mov_b64 exec, -1")
    for r in range(8):
        i("v_mul_f32 v%d, v4, v%d" % (24 + r, 8 + r))
    for r in range(0, 8, 2):
        i("v_permlane32_swap_b32 v%d, v%d" % (24 + r, 25 + r))
    for r in range(0, 8, 2):
        i("v_add_f32 v%d, v%d, v%d" % (24 + r, 24 + r, 25 + r))
    i("v_permlane16_swap_b32 v24, v26")
    i("v_permlane16_swap_b32 v28, v30")
    i("v_add_f32 v24, v24, v26")
    i("v_add_f32 v28, v28, v30")
    i("v_add_f32_dpp v24, v24, v24 row_ror:8 row_mask:0xf bank_mask:0x3")
    i("v_add_f32_dpp v24, v28, v28 row_ror:8 row_mask:0xf bank_mask:0xc")
    i("v_add_f32_dpp v24, v24, v24 row_half_mirror row_mask:0xf bank_mask:0xf")
    i("v_add_f32_dpp v24, v24, v24 quad_perm:[1,0,3,2] row_mask:0xf bank_mask:0xf")
    i("v_add_f32_dpp v24, v24, v24 quad_perm:[2,3,0,1] row_mask:0xf bank_mask:0xf")
    i("v_cvt_pk_bf16_f32 v24, v24, v24")
    i("s_mov_b32 exec_lo, 0x01010101")
    i("s_mov_b32 exec_hi, 0x01010101")
    i("buffer_store_short v24, v3, s[52:55], s17 offen")
    if args.stamps:
        stamp(7)
        i("s_waitcnt lgkmcnt(0)")
        i("s_mov_b64 exec, 1")
        for r in range(16):
            i("v_mov_b32 v%d, s%d" % (32 + r, 84 + (r & 1 if args.stamps == 2 and 2 <= r < 12 else r)))
        i("s_getreg_b32 s72, hwreg(HW_REG_XCC_ID)")
        i("v_mov_b32 v35, s72")
        i("s_lshl_b32 s73, s2, 6")
        i("s_add_u32 s73, s73, %d" % STAMP_OFF)
        for r in range(4):
            i("buffer_store_dwordx4 %s, v50, s[48:51], s73 offen offset:%d" % (vr(32 + 4 * r), 16 * r))
    e.raw("L_end:")
    i("s_endpgm")

    out = HEADER
    out += "; @launch grid=(256,1,1) block=(512,1,1) lds=%d\n" % LDS_BYTES
    out += '.amdgcn_target "amdgcn-amd-amdhsa--gfx950"\n.text\n'
    out += e.text()
    out += '.section .rodata,"a"\n'
    nv = (RB + 4 * args.depth + 7) // 8 * 8
    for name, ns in ((KN, 102),):
        out += ".p2align 6\n.amdhsa_kernel %s\n" % name
        out += "  .amdhsa_next_free_vgpr %d\n  .amdhsa_next_free_sgpr %d\n  .amdhsa_accum_offset %d\n" % (nv, ns, nv)
        out += "  .amdhsa_group_segment_fixed_size 0\n  .amdhsa_kernarg_size 104\n"
        out += "  .amdhsa_user_sgpr_count 2\n  .amdhsa_user_sgpr_kernarg_segment_ptr 1\n"
        out += "  .amdhsa_system_sgpr_workgroup_id_x 1\n.end_amdhsa_kernel\n"
    return out


if __name__ == "__main__":
    ap = argparse.ArgumentParser()
    ap.add_argument("-o", default="cdna_kernels/%s.s" % NAME)
    ap.add_argument("--seq", default="q4,k4,(q1,k2)x11,q1,kr,v20,B,or,vr")
    ap.add_argument("--early", type=int, default=0)
    ap.add_argument("--nopoll", type=int, default=0)
    ap.add_argument("--wq_gate", type=int, default=1)
    ap.add_argument("--woh", type=int, default=0)
    ap.add_argument("--xpace", type=int, default=1)
    ap.add_argument("--yp4", type=int, default=1)
    ap.add_argument("--wqw", type=int, default=0)
    ap.add_argument("--leader", type=int, default=1)
    ap.add_argument("--w", type=int, default=6)
    ap.add_argument("--w0", type=int, default=8)
    ap.add_argument("--bq", type=int, default=4)
    ap.add_argument("--bk", type=int, default=2)
    ap.add_argument("--flag_at", type=int, default=12)
    ap.add_argument("--ml_at", type=int, default=20)
    ap.add_argument("--depth", type=int, default=46)
    ap.add_argument("--polls", type=int, default=4)
    ap.add_argument("--few", type=int, default=8)
    ap.add_argument("--stamps", type=int, default=0)
    args = ap.parse_args()
    open(args.o, "w").write(gen(args))
```

```python
import sys, os, argparse, re
sys.path.insert(0, os.path.dirname(__file__))
from emit import Emitter

NAME = "concat_heads__sliding_block_cached__sliding_block_cached__decode"
HEADER = open("cdna_kernels/%s.s.ref" % NAME).read().split("; Override launch geometry")[0]

LOG2E = "0x3fb8aa3b"
SCALE = 0x3DB504F3

PSTR = 528
L_QP = 0
L_QB = 4352
L_ML = 4608
L_OP = 4864
OSTR = 288
L_WO = 8192
LDS_BYTES = L_WO + 131072

WS_ML = 512 * 1024
STAMP_OFF = 8 << 20
SPIN_MAX = 1 << 16


def vr(b, n=4):
    return "v[%d:%d]" % (b, b + n - 1)


def gen(args):
    e = Emitter()
    i = e.i
    MASK, SEL, XD, QD = 8, 12, 20, 28
    AB = [32, 36]
    ACC = 40
    T = [44, 48]
    S = 52
    RB = 68
    KN = NAME + "_kernel"
    CW = 0
    QS, GS, WS = 15, 17, 19

    def stamp(k):
        if args.stamps == 2 and k in (1, 2, 3, 4, 5):
            return
        if args.stamps and (k > 5 or k == 0 or bool(args.early) == bool(state.get("early", 1))):
            i("s_memrealtime s[%d:%d]" % (84 + 2 * k, 85 + 2 * k))

    state = {}
    fl = dict(zip(["k", "v", "wq", "wo"], [(" " + x.replace("+", " ")) if x else "" for x in args.fl.split(",")]))
    src = {"q": [("wq", k) for k in range(16)], "k": [("k", k) for k in range(32)],
           "v": [("v", k) for k in range(32)], "o": [("wo", k) for k in range(16)]}
    txt = re.sub(r"\(([^)]*)\)x(\d+)", lambda m: ",".join([m.group(1)] * int(m.group(2))), args.seq)
    seq = []
    bars = set()
    for tok in txt.split(","):
        if tok == "B":
            bars.add(len(seq))
            continue
        n = 99 if tok[1:] == "r" else int(tok[1:])
        seq += src[tok[0]][:n]
        src[tok[0]] = src[tok[0]][n:]
    assert len(seq) == 96 and len(set(seq)) == len(seq)
    pos = {t: n for n, t in enumerate(seq)}

    def is_h(t):
        return t[0] in "kv" or (t[0] == "wq" and t[1] < 4) or (t[0] == "wo" and t[1] < 4 and args.woh)

    gate = {("wq", 4): ("wq", 3)} if args.wq_gate else {}
    D = args.depth
    free = [RB + 4 * n for n in range(D)]
    reg = {}
    state.update({"next": 0, "landed": -1, "W": args.wqw or args.w})

    def issue():
        n = state["next"]
        t = seq[n]
        kind, k = t
        state["next"] = n + 1
        if n in bars:
            i("s_barrier")
        if kind == "wo":
            if k & 3 == 0:
                i("s_add_u32 m0, s19, s%d" % (74 + (k >> 2)))
                i("s_lshl_b32 s81, s%d, 3" % (74 + (k >> 2)))
            else:
                i("s_add_u32 s81, s81, 7168")
            i("buffer_load_dwordx4 v6, s[40:43], s81 offen offset:%d%s lds" % ((k & 3) * 1024, fl["wo"]), tag=t)
            return
        reg[t] = free.pop(0)
        dst = vr(reg[t])
        if kind == "wq":
            if k & 3 == 0:
                i("s_lshl_b32 s81, s%d, %d" % (74 + (k >> 2), QS - 12))
            else:
                i("s_add_u32 s81, s81, 0x2000")
            i("buffer_load_dwordx4 %s, v5, s[36:39], s81 offen%s" % (dst, fl["wq"]), tag=t)
        else:
            i("buffer_load_dwordx4 %s, v4, %s, s%d offen offset:%d%s" % (
                dst, "s[28:31]" if kind == "k" else "s[32:35]", 66 + (k >> 2), (k & 3) * 1024, fl[kind]), tag=t)

    def pump(W=None, upto=None):
        W = W or state["W"]
        while state["next"] < len(seq) and free and (upto is None or state["next"] < upto):
            t = seq[state["next"]]
            if t in gate and pos[gate[t]] > state["landed"]:
                break
            if is_h(t) and sum(is_h(u) for u in seq[state["landed"] + 1:state["next"]]) >= W:
                break
            issue()

    def wait(t, W=None):
        while state["landed"] < pos[t]:
            nxt = state["landed"] + 1
            assert nxt < state["next"], ("stuck", t)
            lim = min(pos[t], state["next"] - 1)
            while nxt < lim and not is_h(seq[nxt]):
                nxt += 1
            if not free or state["next"] >= len(seq):
                nxt = lim
            e.wait_vm(seq[nxt])
            state["landed"] = nxt
            pump(W)

    def release(t):
        free.append(reg[t])

    e.raw(".globl %s\n.p2align 8\n.type %s,@function\n%s:" % (KN, KN, KN))
    i("s_cmp_ge_u32 s2, 256")
    i("s_cbranch_scc1 L_end")
    i("s_bfe_u32 s61, s2, 0x10002")
    i("s_mul_i32 s26, s61, 40")
    i("s_load_dwordx8 s[8:15], s[0:1], s26")
    i("s_load_dwordx2 s[16:17], s[0:1], s26 offset:32")
    i("s_load_dwordx4 s[20:23], s[0:1], 80")
    i("s_load_dwordx2 s[24:25], s[0:1], 96")
    stamp(0)
    i("s_and_b32 s62, s2, 3")
    i("s_lshl_b32 s62, s62, 3")
    i("s_lshr_b32 s60, s2, 5")
    i("s_add_u32 s62, s62, s60")
    i("s_bfe_u32 s63, s2, 0x10004")
    i("s_bfe_u32 s64, s2, 0x10003")
    i("v_lshrrev_b32 v7, 6, v0")
    i("v_lshlrev_b32 v4, 4, v0")
    i("s_movk_i32 s4, 3072")
    i("v_mad_u32_u24 v4, v7, s4, v4")
    i("s_lshl_b32 s18, s63, 5")
    i("s_add_u32 s18, s18, s62")
    i("s_lshl_b32 s18, s18, 3")
    i("s_add_u32 s18, s18, s64")
    i("s_add_u32 s18, s18, 6")
    i("s_lshl_b32 s18, s18, 18")
    i("s_mov_b32 s30, 0x40000")
    i("s_mov_b32 s31, 0x20000")
    i("s_lshr_b32 s65, s2, 3")
    i("s_and_b32 s66, s65, 7")
    i("s_lshl_b32 s66, s66, 15")
    i("v_and_b32 v2, 15, v0")
    i("v_bfe_u32 v3, v0, 4, 2")
    i("v_lshlrev_b32 v5, 4, v2")
    i("v_lshl_add_u32 v5, v3, %d, v5" % GS)
    i("v_lshl_add_u32 v5, v7, %d, v5" % WS)
    i("s_lshl_b32 s19, s62, 8")
    i("s_sub_u32 s38, 0x400000, s19")
    i("s_mov_b32 s39, 0x20000")
    i("s_and_b32 s74, s65, 3")
    i("s_lshl_b32 s74, s74, 12")
    i("s_waitcnt lgkmcnt(0)")
    stamp(1)
    first = seq[0][0]
    for kind in (["k", "wq"] if first == "k" else ["wq", "k"]):
        if kind == "k":
            i("s_add_u32 s28, s10, s18")
            i("s_addc_u32 s29, s11, 0")
        else:
            i("s_add_u32 s36, s14, s19")
            i("s_addc_u32 s37, s15, 0")
        while seq[state["next"]][0] == first and kind == first and seq[state["next"]][1] < 4:
            issue()
    while seq[state["next"]][1] < 4 and seq[state["next"]][0] in ("k", "wq") and state["next"] < args.w0:
        issue()
    stamp(2)
    for a in range(1, 8):
        i("s_add_u32 s%d, s%d, 0x8000" % (66 + a, 65 + a))
        i("s_and_b32 s%d, s%d, 0x38000" % (66 + a, 66 + a))
    for q in range(1, 4):
        i("s_add_u32 s%d, s%d, 0x1000" % (74 + q, 73 + q))
        i("s_and_b32 s%d, s%d, 0x3000" % (74 + q, 74 + q))
    i("v_lshlrev_b32 v61, %d, v3" % (GS - 12))
    i("v_lshl_add_u32 v61, v7, %d, v61" % (WS - 12))
    i("s_lshl_b32 s27, s63, 10")
    i("s_add_u32 s44, s8, s27")
    i("s_addc_u32 s45, s9, 0")
    i("s_movk_i32 s46, 0x400")
    i("s_mov_b32 s47, 0x20000")
    for q in range(4):
        i("s_lshr_b32 s4, s%d, %d" % (74 + q, 24 - QS))
        i("buffer_load_dwordx2 %s, v61, s[44:47], s4 offen" % vr(XD + 2 * q, 2), tag="x%d" % q)
    xpos = state["next"] - 1
    i("v_readfirstlane_b32 s3, v7")
    i("v_and_b32 v1, 63, v0")
    i("s_mov_b32 s48, s24")
    i("s_mov_b32 s49, s25")
    i("s_mov_b32 s50, 0x1000000")
    i("s_mov_b32 s51, 0x20000")
    i("s_lshl_b32 s7, s61, 1")
    i("s_add_u32 s7, s7, s63")
    i("s_lshl_b32 s78, s62, 1")
    i("s_add_u32 s78, s78, s64")
    i("s_lshl_b32 s80, s7, 6")
    i("s_add_u32 s80, s80, s78")
    i("s_lshl_b32 s79, s80, 11")
    i("s_lshl_b32 s80, s80, 3")
    i("s_add_u32 s80, s80, %d" % WS_ML)
    i("v_lshlrev_b32 v65, 2, v0")
    for r in range(4):
        i("v_mov_b32 v%d, -1" % (44 + r))
    if args.yp4:
        i("v_lshlrev_b32 v48, 4, v2")
        i("v_lshl_add_u32 v48, v7, 8, v48")
        i("s_mov_b64 exec, 0xffff")
        i("buffer_store_dwordx4 v[44:47], v48, s[48:51], s79 offen sc1", tag="yp")
        i("s_mov_b64 exec, -1")
    else:
        i("buffer_store_dword v44, v65, s[48:51], s79 offen sc1", tag="yp")
    i("s_lshl_b32 s6, s2, 3")
    i("s_add_u32 s6, s6, s3")
    i("s_cmp_lg_u32 s6, %d" % args.leader)
    i("s_cbranch_scc1 L_nopoison")
    i("v_lshlrev_b32 v48, 4, v1")
    i("s_mov_b32 s4, %d" % WS_ML)
    i("buffer_store_dwordx4 v[44:47], v48, s[48:51], s4 offen sc1")
    i("buffer_store_dwordx4 v[44:47], v48, s[48:51], s4 offen offset:1024 sc1")
    del e.vm[-2:]
    e.raw("L_nopoison:")
    poison_pos = state["next"]
    i("s_add_u32 s32, s12, s18")
    i("s_addc_u32 s33, s13, 0")
    i("s_mov_b32 s34, 0x40000")
    i("s_mov_b32 s35, 0x20000")
    i("s_lshl_b32 s26, s62, 17")
    i("s_add_u32 s40, s16, s26")
    i("s_addc_u32 s41, s17, 0")
    i("s_mov_b32 s42, 0x20000")
    i("s_mov_b32 s43, 0x20000")
    i("v_bfe_u32 v60, v0, 4, 2")
    i("v_lshlrev_b32 v60, 1, v60")
    i("v_and_b32 v6, 7, v0")
    i("v_xor_b32 v6, v6, v60")
    i("v_lshlrev_b32 v6, 4, v6")
    i("v_bfe_u32 v60, v0, 3, 3")
    i("v_lshl_add_u32 v6, v60, 10, v6")
    i("v_lshl_add_u32 v6, v7, 7, v6")
    i("s_lshl_b32 s19, s3, 14")
    i("s_add_u32 s19, s19, %d" % L_WO)
    pump(args.w0)
    i("s_mov_b32 s52, s20")
    i("s_mov_b32 s53, s21")
    i("s_movk_i32 s54, 0x1000")
    i("s_mov_b32 s55, 0x20000")
    i("s_mov_b32 s56, s22")
    i("s_mov_b32 s57, s23")
    i("s_movk_i32 s58, 0x100")
    i("s_mov_b32 s59, 0x20000")
    i("v_and_b32 v60, 1, v2")
    i("v_lshlrev_b32 v60, 4, v60")
    i("v_mov_b32 v62, 0xffff")
    i("v_lshlrev_b32 v62, v60, v62")
    i("v_bfe_u32 v60, v0, 1, 2")
    for r in range(4):
        i("v_cmp_eq_u32 vcc, %d, v60" % r)
        i("v_cndmask_b32 v%d, 0, v62, vcc" % (MASK + r))
    i("s_mov_b32 s4, 0x0c0c0c0c")
    i("v_mov_b32 v60, 0x01000100")
    i("v_mov_b32 v62, 0x03020302")
    for r in range(4):
        i("v_bfi_b32 v%d, v%d, v60, s4" % (SEL + r, MASK + r))
        i("v_bfi_b32 v%d, v%d, v62, s4" % (SEL + 4 + r, MASK + r))

    def sel_a(k, src_dw):
        a = AB[k & 1]
        for r in range(4):
            i("v_perm_b32 v%d, v%d, v%d, v%d" % (a + r, src_dw + (k >> 1), src_dw + (k >> 1), SEL + 4 * (k & 1) + r))
        return a

    i("v_lshlrev_b32 v60, 5, v2")
    i("v_lshl_add_u32 v60, v3, 4, v60")
    i("s_mul_i32 s5, s3, %d" % PSTR)
    i("v_add_u32 v60, s5, v60")
    i("v_and_b32 v61, 3, v0")
    i("v_mul_u32_u24 v61, %d, v61" % (2 * PSTR))
    i("v_lshrrev_b32 v62, 2, v0")
    i("v_lshl_add_u32 v61, v62, 2, v61")
    i("v_lshlrev_b32 v62, 1, v62")

    if args.early:
        stamp(3)
        e.wait_vm(seq[0])
        stamp(4)
    if args.xpace:
        wait(seq[xpos])
    e.wait_vm("x3")
    stamp(5)
    state["early"] = 0
    state["landed"] = max(state["landed"], xpos)
    pump()

    def signal():
        assert state["landed"] >= poison_pos
        i("s_cmp_lg_u32 s6, %d" % args.leader)
        i("s_cbranch_scc1 L_nosignal")
        i("v_mov_b32 v48, 1")
        i("v_mov_b32 v49, 0")
        i("s_mov_b64 exec, 1")
        i("buffer_store_dword v48, v49, s[56:59], 0 offen sc1")
        e.vm.pop()
        i("s_mov_b64 exec, -1")
        e.raw("L_nosignal:")

    def flagload():
        i("s_cmp_lg_u32 s3, %d" % CW)
        i("s_cbranch_scc1 L_noflag")
        i("v_mov_b32 v64, 0")
        i("buffer_load_dword v64, v64, s[56:59], 0 offen sc1")
        e.vm.pop()
        e.raw("L_noflag:")
        state["flag_pos"] = state["next"]

    for k in range(16):
        a = sel_a(k, XD)
        wait(("wq", k))
        if k == 4:
            signal()
        i("v_mfma_f32_16x16x32_bf16 %s, %s, %s, %s" % (vr(ACC), vr(a), vr(reg[("wq", k)]), "0" if k == 0 else vr(ACC)))
        release(("wq", k))
        pump()
        if k == args.flag_at:
            flagload()
    pump(state["W"] + args.bq)
    state["W"] = args.w

    stamp(1)
    i("s_mov_b32 exec_hi, 0")
    i("ds_write_b128 v60, %s offset:%d" % (vr(ACC), L_QP))
    i("s_mov_b32 exec_hi, -1")
    i("v_lshlrev_b32 v44, 4, v2")
    i("s_waitcnt lgkmcnt(0)")
    i("s_barrier")
    i("ds_read2_b32 v[46:47], v61 offset0:0 offset1:%d" % (PSTR // 4))
    i("s_waitcnt lgkmcnt(0)")
    i("v_add_f32 v46, v46, v47")
    i("v_add_f32_dpp v46, v46, v46 quad_perm:[1,0,3,2] row_mask:0xf bank_mask:0xf")
    i("v_add_f32_dpp v46, v46, v46 quad_perm:[2,3,0,1] row_mask:0xf bank_mask:0xf")
    i("v_cvt_pk_bf16_f32 v46, v46, v46")
    i("ds_write_b16 v62, v46 offset:%d" % L_QB)
    i("s_waitcnt lgkmcnt(0)")
    i("s_barrier")
    i("ds_read_b128 %s, v44 offset:%d" % (vr(QD), L_QB))
    wait(seq[state["next"] - args.w])
    i("s_waitcnt lgkmcnt(0)")
    stamp(2)


    def merge(a):
        t = T[a & 1]
        i("v_add_f32_dpp v%d, v%d, v%d row_ror:8 row_mask:0xf bank_mask:0x3" % (t, t, t))
        i("v_add_f32_dpp v%d, v%d, v%d row_ror:8 row_mask:0xf bank_mask:0x3" % (t + 2, t + 2, t + 2))
        i("v_add_f32_dpp v%d, v%d, v%d row_ror:8 row_mask:0xf bank_mask:0xc" % (t, t + 1, t + 1))
        i("v_add_f32_dpp v%d, v%d, v%d row_ror:8 row_mask:0xf bank_mask:0xc" % (t + 2, t + 3, t + 3))
        s = S + a
        i("v_add_f32_dpp v%d, v%d, v%d row_half_mirror row_mask:0xf bank_mask:0x5" % (s, t, t))
        i("v_add_f32_dpp v%d, v%d, v%d row_half_mirror row_mask:0xf bank_mask:0xa" % (s, t + 2, t + 2))
        i("v_add_f32_dpp v%d, v%d, v%d quad_perm:[1,0,3,2] row_mask:0xf bank_mask:0xf" % (s, s, s))
        i("v_add_f32_dpp v%d, v%d, v%d quad_perm:[2,3,0,1] row_mask:0xf bank_mask:0xf" % (s, s, s))

    for a in range(8):
        t = T[a & 1]
        wait(("k", 4 * a + 3))
        for d in range(4):
            for q in range(4):
                kr = reg[("k", 4 * a + q)] + d
                i("v_dot2_f32_bf16 v%d, v%d, v%d, %s" % (t + q, kr, QD + d, "0" if d == 0 else "v%d" % (t + q)))
        for q in range(4):
            release(("k", 4 * a + q))
        pump()
        merge(a)
    pump(args.w + args.bk)
    stamp(3)

    i("s_mov_b32 s4, 0xffff0000")
    i("s_mov_b32 s5, 0x%x" % SCALE)
    i("s_mov_b32 s6, %s" % LOG2E)
    for a in range(8):
        i("v_cvt_pk_bf16_f32 v%d, v%d, v%d" % (S + a, S + a, S + a))
    for a in range(8):
        i("v_and_b32 v%d, s4, v%d" % (S + a, S + a))
    for a in range(8):
        i("v_mul_f32 v%d, s5, v%d" % (S + a, S + a))
    for a in range(8):
        i("v_cvt_pk_bf16_f32 v%d, v%d, v%d" % (S + a, S + a, S + a))
    for a in range(8):
        i("v_and_b32 v%d, s4, v%d" % (S + a, S + a))
    i("v_max3_f32 v44, v%d, v%d, v%d" % (S, S + 1, S + 2))
    i("v_max3_f32 v45, v%d, v%d, v%d" % (S + 3, S + 4, S + 5))
    i("v_max3_f32 v44, v44, v%d, v%d" % (S + 6, S + 7))
    i("v_max_f32 v44, v44, v45")

    def allred(op, r, t):
        i("%s_dpp v%d, v%d, v%d row_ror:4 row_mask:0xf bank_mask:0xf" % (op, r, r, r))
        i("%s_dpp v%d, v%d, v%d row_ror:8 row_mask:0xf bank_mask:0xf" % (op, r, r, r))
        i("v_mov_b32 v%d, v%d" % (t, r))
        i("v_permlane16_swap_b32 v%d, v%d" % (r, t))
        i("%s v%d, v%d, v%d" % (op, r, r, t))
        i("v_mov_b32 v%d, v%d" % (t, r))
        i("v_permlane32_swap_b32 v%d, v%d" % (r, t))
        i("%s v%d, v%d, v%d" % (op, r, r, t))

    allred("v_max_f32", 44, 45)
    for a in range(8):
        i("v_sub_f32 v%d, v%d, v44" % (S + a, S + a))
    for a in range(8):
        i("v_mul_f32 v%d, s6, v%d" % (S + a, S + a))
    for a in range(8):
        i("v_exp_f32 v%d, v%d" % (S + a, S + a))
    i("v_add_f32 v45, v%d, v%d" % (S, S + 1))
    i("v_add_f32 v46, v%d, v%d" % (S + 2, S + 3))
    i("v_add_f32 v47, v%d, v%d" % (S + 4, S + 5))
    i("v_add_f32 v48, v%d, v%d" % (S + 6, S + 7))
    i("v_add_f32 v45, v45, v46")
    i("v_add_f32 v47, v47, v48")
    i("v_add_f32 v45, v45, v47")
    allred("v_add_f32", 45, 46)
    i("s_lshl_b32 s5, s3, 3")
    i("v_mov_b32 v46, s5")
    i("ds_write_b64 v46, v[44:45] offset:%d" % L_ML)
    i("v_bfe_u32 v13, v0, 2, 3")
    i("v_lshlrev_b32 v12, 7, v13")
    i("v_lshrrev_b32 v13, 1, v13")
    i("v_lshl_add_u32 v12, v13, 5, v12")
    i("v_and_b32 v13, 3, v0")
    i("v_lshl_add_u32 v12, v13, 3, v12")
    i("v_bfe_u32 v13, v0, 5, 1")
    i("v_lshl_add_u32 v12, v13, 11, v12")
    i("v_add_u32 v12, s19, v12")
    for nt in range(1, 4):
        i("v_xor_b32 v%d, %d, v12" % (12 + nt, nt << 5))
    i("v_lshrrev_b32 v16, 1, v2")
    i("v_lshlrev_b32 v16, 5, v16")
    i("v_bfe_u32 v17, v0, 4, 1")
    i("v_lshl_add_u32 v16, v17, 4, v16")
    i("v_and_b32 v17, 1, v0")
    i("v_lshl_add_u32 v16, v17, 3, v16")
    i("s_mul_i32 s5, s3, %d" % OSTR)
    i("v_add_u32 v16, s5, v16")
    i("v_and_b32 v46, 7, v0")
    i("v_mul_u32_u24 v17, %d, v46" % OSTR)
    i("v_lshl_add_u32 v17, v3, 4, v17")
    i("v_lshlrev_b32 v46, 3, v46")
    bank = [0, 2, 1, 3]
    bfrag = {}

    def trread(kt):
        assert state["landed"] >= pos[("wo", 15)]
        for nt in range(4):
            b = free.pop()
            bfrag[(kt, nt)] = b
            for j in range(2):
                i("ds_read_b64_tr_b16 %s, v%d offset:%d" % (vr(b + 2 * j, 2), 12 + nt, kt * 4096 + j * 1024))

    def pv(k):
        a = AB[k & 1]
        for r in range(4):
            i("v_and_b32_dpp v%d, v%d, v%d row_newbcast:%d row_mask:0xf bank_mask:0xf" % (
                a + r, S + (k >> 2), MASK + r, 4 * bank[k & 3]))
        wait(("v", k))
        i("v_mfma_f32_16x16x32_bf16 %s, %s, %s, %s" % (vr(ACC), vr(a), vr(reg[("v", k)]), "0" if k == 0 else vr(ACC)))
        release(("v", k))
        pump()
        if state["landed"] >= pos[("wo", 15)] and len(bfrag) < 16:
            trread(len(bfrag) // 4)

    i("s_waitcnt lgkmcnt(0)")
    assert "yp" not in e.vm
    i("s_barrier")
    i("ds_read_b64 v[46:47], v46 offset:%d" % L_ML)
    wait(seq[state["next"] - args.w])
    i("v_mov_b32 v50, 0")
    i("s_waitcnt lgkmcnt(0)")
    i("v_mov_b32 v48, v46")
    i("v_max_f32_dpp v48, v48, v48 quad_perm:[1,0,3,2] row_mask:0xf bank_mask:0xf")
    i("v_max_f32_dpp v48, v48, v48 quad_perm:[2,3,0,1] row_mask:0xf bank_mask:0xf")
    i("v_max_f32_dpp v48, v48, v48 row_half_mirror row_mask:0xf bank_mask:0xf")
    i("v_sub_f32 v46, v46, v48")
    i("v_sub_f32 v44, v44, v48")
    i("v_mul_f32 v46, s6, v46")
    i("v_mul_f32 v44, s6, v44")
    i("v_exp_f32 v46, v46")
    i("v_exp_f32 v44, v44")
    i("v_mul_f32 v49, v46, v47")
    for a in range(8):
        i("v_mul_f32 v%d, v44, v%d" % (S + a, S + a))
    for a in range(8):
        i("v_cvt_pk_bf16_f32 v%d, v%d, v%d" % (S + a, S + a, S + a))
    i("s_cmp_lg_u32 s3, %d" % CW)
    i("s_cbranch_scc1 L_noml")
    i("v_add_f32_dpp v49, v49, v49 quad_perm:[1,0,3,2] row_mask:0xf bank_mask:0xf")
    i("v_add_f32_dpp v49, v49, v49 quad_perm:[2,3,0,1] row_mask:0xf bank_mask:0xf")
    i("v_add_f32_dpp v49, v49, v49 row_half_mirror row_mask:0xf bank_mask:0xf")
    assert state["landed"] >= state["flag_pos"]
    i("s_mov_b32 s5, 0")
    e.label("L_flag")
    i("v_readfirstlane_b32 s4, v64")
    i("s_add_u32 s5, s5, 1")
    i("s_cmp_eq_u32 s4, 1")
    i("s_cbranch_scc1 L_flag_ok")
    i("s_cmp_ge_u32 s5, %d" % SPIN_MAX)
    i("s_cbranch_scc1 L_flag_ok")
    i("buffer_load_dword v64, v50, s[56:59], 0 offen sc1")
    e.vm.pop()
    i("s_waitcnt vmcnt(0)")
    i("s_branch L_flag")
    e.label("L_flag_ok")
    i("v_min_u32 v48, -2, v48")
    i("v_min_u32 v49, -2, v49")
    i("s_mov_b64 exec, 1")
    i("buffer_store_dwordx2 v[48:49], v50, s[48:51], s80 offen sc1")
    e.vm.pop()
    i("s_mov_b64 exec, -1")
    e.raw("L_noml:")
    i("s_lshl_b32 s6, s7, 9")
    i("s_add_u32 s6, s6, %d" % WS_ML)
    i("v_lshlrev_b32 v45, 3, v1")
    for k in range(32):
        pv(k)
        if k == args.ml_at:
            i("s_cmp_lg_u32 s3, %d" % CW)
            i("s_cbranch_scc1 L_nomlpre")
            i("buffer_load_dwordx2 v[48:49], v45, s[48:51], s6 offen sc1")
            e.vm.pop()
            e.raw("L_nomlpre:")
    assert len(bfrag) == 16
    stamp(4)
    i("v_cvt_pk_bf16_f32 v%d, v%d, v%d" % (ACC, ACC, ACC + 1))
    i("v_cvt_pk_bf16_f32 v%d, v%d, v%d" % (ACC + 1, ACC + 2, ACC + 3))
    i("ds_write_b64 v16, %s offset:%d" % (vr(ACC, 2), L_OP))
    i("s_waitcnt lgkmcnt(0)")
    i("s_barrier")
    AF = [52, 56, 60, 8]
    YD = 24
    for kt in range(4):
        i("ds_read_b128 %s, v17 offset:%d" % (vr(AF[kt]), L_OP + kt * 64))
    stamp(5)
    for kt in range(4):
        i("s_waitcnt lgkmcnt(%d)" % (0 if args.stamps == 1 else 3 - kt))
        for nt in range(4):
            d = vr(YD + 4 * nt)
            i("v_mfma_f32_16x16x32_bf16 %s, %s, %s, %s" % (d, vr(AF[kt]), vr(bfrag[(kt, nt)]), "0" if kt == 0 else d))
    for nt in range(4):
        d = YD + 4 * nt
        i("v_pk_add_f32 %s, %s, %s" % (vr(d, 2), vr(d, 2), vr(d + 2, 2)))
    for nt in range(4):
        d = YD + 4 * nt
        i("v_add_f32 v%d, v%d, v%d" % (d, d, d + 1))
    i("v_permlane16_swap_b32 v%d, v%d" % (YD, YD + 4))
    i("v_permlane16_swap_b32 v%d, v%d" % (YD + 8, YD + 12))
    i("v_add_f32 v%d, v%d, v%d" % (YD, YD, YD + 4))
    i("v_add_f32_dpp v%d, v%d, v%d quad_perm:[0,1,2,3] row_mask:0xc bank_mask:0xf" % (YD, YD + 8, YD + 12))
    i("v_min_u32 v%d, -2, v%d" % (YD, YD))
    i("buffer_store_dword v%d, v65, s[48:51], s79 offen sc1" % YD)
    i("s_cmp_lg_u32 s3, %d" % CW)
    i("s_cbranch_scc1 L_end")

    e.vm = []
    stamp(6)
    i("s_mov_b32 s82, 0")
    i("s_lshl_b32 s5, s7, 17")
    i("s_lshl_b32 s4, s78, 5")
    i("s_add_u32 s5, s5, s4")
    i("v_lshlrev_b32 v16, 11, v1")
    i("s_waitcnt vmcnt(1)")
    if args.nopoll:
        i("s_branch L_y_ok")
    e.label("L_ml")
    i("v_max_u32 v18, v48, v49")
    i("v_cmp_eq_u32 vcc, -1, v18")
    i("s_add_u32 s82, s82, 1")
    i("s_nop 1")
    i("s_cbranch_vccz L_ml_ok")
    i("s_cmp_ge_u32 s82, %d" % SPIN_MAX)
    i("s_cbranch_scc1 L_ml_ok")
    i("buffer_load_dwordx2 v[48:49], v45, s[48:51], s6 offen sc1")
    i("s_waitcnt vmcnt(0)")
    i("s_branch L_ml")
    e.label("L_ml_ok")
    i("buffer_load_dwordx4 v[8:11], v16, s[48:51], s5 offen sc1")
    i("buffer_load_dwordx4 v[12:15], v16, s[48:51], s5 offen offset:16 sc1")
    i("s_lshl_b32 s17, s63, 11")
    i("s_lshl_b32 s18, s61, 10")
    i("s_add_u32 s17, s17, s18")
    i("s_lshl_b32 s18, s78, 4")
    i("s_add_u32 s17, s17, s18")
    i("v_bfe_u32 v3, v1, 4, 1")
    i("v_lshlrev_b32 v3, 1, v3")
    i("v_bfe_u32 v18, v1, 5, 1")
    i("v_add_u32 v3, v3, v18")
    i("v_bfe_u32 v18, v1, 3, 1")
    i("v_lshl_add_u32 v3, v18, 2, v3")
    i("v_lshlrev_b32 v3, 1, v3")
    i("v_max_f32_dpp v6, v48, v48 quad_perm:[1,0,3,2] row_mask:0xf bank_mask:0xf")
    i("v_sub_f32 v4, v48, v6")
    i("v_mul_f32 v4, %s, v4" % LOG2E)
    i("v_exp_f32 v4, v4")
    i("v_mul_f32 v5, v49, v4")
    i("v_add_f32_dpp v5, v5, v5 quad_perm:[1,0,3,2] row_mask:0xf bank_mask:0xf")
    i("v_rcp_f32 v5, v5")
    i("v_mul_f32 v4, v4, v5")
    P = args.polls
    e.label("L_y")
    i("s_waitcnt vmcnt(%d)" % 0)
    e.label("L_y2")
    i("v_max3_u32 v18, v8, v9, v10")
    i("v_max3_u32 v19, v11, v12, v13")
    i("v_max3_u32 v18, v18, v14, v15")
    i("v_max_u32 v18, v18, v19")
    i("v_cmp_eq_u32 vcc, -1, v18")
    i("s_add_u32 s82, s82, 1")
    i("s_nop 1")
    i("s_cbranch_vccz L_y_ok")
    i("s_cmp_ge_u32 s82, %d" % SPIN_MAX)
    i("s_cbranch_scc1 L_y_ok")
    i("s_mov_b64 exec, vcc")
    i("buffer_load_dwordx4 v[8:11], v16, s[48:51], s5 offen sc1")
    i("buffer_load_dwordx4 v[12:15], v16, s[48:51], s5 offen offset:16 sc1")
    if P > 1:
        i("s_bcnt1_i32_b64 s83, vcc")
        i("s_cmp_gt_u32 s83, %d" % args.few)
        i("s_cbranch_scc1 L_y")
        i("s_waitcnt vmcnt(%d)" % (2 * (P - 1)))
        i("s_branch L_y2")
    else:
        i("s_branch L_y")
    e.label("L_y_ok")
    i("s_mov_b64 exec, -1")
    for r in range(8):
        i("v_mul_f32 v%d, v4, v%d" % (24 + r, 8 + r))
    for r in range(0, 8, 2):
        i("v_permlane32_swap_b32 v%d, v%d" % (24 + r, 25 + r))
    for r in range(0, 8, 2):
        i("v_add_f32 v%d, v%d, v%d" % (24 + r, 24 + r, 25 + r))
    i("v_permlane16_swap_b32 v24, v26")
    i("v_permlane16_swap_b32 v28, v30")
    i("v_add_f32 v24, v24, v26")
    i("v_add_f32 v28, v28, v30")
    i("v_add_f32_dpp v24, v24, v24 row_ror:8 row_mask:0xf bank_mask:0x3")
    i("v_add_f32_dpp v24, v28, v28 row_ror:8 row_mask:0xf bank_mask:0xc")
    i("v_add_f32_dpp v24, v24, v24 row_half_mirror row_mask:0xf bank_mask:0xf")
    i("v_add_f32_dpp v24, v24, v24 quad_perm:[1,0,3,2] row_mask:0xf bank_mask:0xf")
    i("v_add_f32_dpp v24, v24, v24 quad_perm:[2,3,0,1] row_mask:0xf bank_mask:0xf")
    i("v_cvt_pk_bf16_f32 v24, v24, v24")
    i("s_mov_b32 exec_lo, 0x01010101")
    i("s_mov_b32 exec_hi, 0x01010101")
    i("buffer_store_short v24, v3, s[52:55], s17 offen")
    if args.stamps:
        stamp(7)
        i("s_waitcnt lgkmcnt(0)")
        i("s_mov_b64 exec, 1")
        for r in range(16):
            i("v_mov_b32 v%d, s%d" % (32 + r, 84 + (r & 1 if args.stamps == 2 and 2 <= r < 12 else r)))
        i("s_getreg_b32 s72, hwreg(HW_REG_XCC_ID)")
        i("v_mov_b32 v35, s72")
        i("s_lshl_b32 s73, s2, 6")
        i("s_add_u32 s73, s73, %d" % STAMP_OFF)
        for r in range(4):
            i("buffer_store_dwordx4 %s, v50, s[48:51], s73 offen offset:%d" % (vr(32 + 4 * r), 16 * r))
    e.raw("L_end:")
    i("s_endpgm")

    out = HEADER
    out += "; @launch grid=(256,1,1) block=(512,1,1) lds=%d\n" % LDS_BYTES
    out += '.amdgcn_target "amdgcn-amd-amdhsa--gfx950"\n.text\n'
    out += e.text()
    out += '.section .rodata,"a"\n'
    nv = (RB + 4 * args.depth + 7) // 8 * 8
    for name, ns in ((KN, 102),):
        out += ".p2align 6\n.amdhsa_kernel %s\n" % name
        out += "  .amdhsa_next_free_vgpr %d\n  .amdhsa_next_free_sgpr %d\n  .amdhsa_accum_offset %d\n" % (nv, ns, nv)
        out += "  .amdhsa_group_segment_fixed_size 0\n  .amdhsa_kernarg_size 104\n"
        out += "  .amdhsa_user_sgpr_count 2\n  .amdhsa_user_sgpr_kernarg_segment_ptr 1\n"
        out += "  .amdhsa_system_sgpr_workgroup_id_x 1\n.end_amdhsa_kernel\n"
    return out


if __name__ == "__main__":
    ap = argparse.ArgumentParser()
    ap.add_argument("-o", default="cdna_kernels/%s.s" % NAME)
    ap.add_argument("--seq", default="q4,k4,(q1,k2)x11,q1,kr,v18,B,or,vr")
    ap.add_argument("--early", type=int, default=0)
    ap.add_argument("--fl", default="nt,nt,,")
    ap.add_argument("--nopoll", type=int, default=0)
    ap.add_argument("--wq_gate", type=int, default=1)
    ap.add_argument("--woh", type=int, default=0)
    ap.add_argument("--xpace", type=int, default=1)
    ap.add_argument("--yp4", type=int, default=0)
    ap.add_argument("--wqw", type=int, default=0)
    ap.add_argument("--leader", type=int, default=1)
    ap.add_argument("--w", type=int, default=6)
    ap.add_argument("--w0", type=int, default=8)
    ap.add_argument("--bq", type=int, default=4)
    ap.add_argument("--bk", type=int, default=2)
    ap.add_argument("--flag_at", type=int, default=12)
    ap.add_argument("--ml_at", type=int, default=20)
    ap.add_argument("--depth", type=int, default=46)
    ap.add_argument("--polls", type=int, default=4)
    ap.add_argument("--few", type=int, default=8)
    ap.add_argument("--stamps", type=int, default=0)
    args = ap.parse_args()
    open(args.o, "w").write(gen(args))
```
